```python
import torch

def _softmax(x, axis=-1):
    return torch.softmax(x, dim=axis)
def _gelu(x):
    return torch.nn.functional.gelu(x, approximate="tanh")
def _silu(x):
    return torch.nn.functional.silu(x)
def _sigmoid(x):
    return torch.sigmoid(x)
def _layernorm(x, axis=-1, eps=1e-5):
    m = x.mean(dim=axis, keepdim=True)
    v = x.var(dim=axis, keepdim=True, unbiased=False)
    return (x - m) / torch.sqrt(v + eps)
def _scatter_add(tgt, idx, src, axis=0):
    return tgt.clone().index_add_(axis, idx, src)
def _segment_sum(src, seg, n):
    out = torch.zeros((n,) + src.shape[1:], dtype=src.dtype)
    return out.index_add_(0, seg, src)
def _pad(x, pw):
    flat = tuple(v for pair in reversed(pw) for v in pair)
    return torch.nn.functional.pad(x, flat)

kernel_name = 'parallel_sum__sliding_block_cached__swiglu_ffn__decode'

def setup_inputs():

    _w = (lambda a: (lambda t: t.to(torch.bfloat16) if t.is_floating_point() else t)(torch.as_tensor(a)))
    def _A_setup():
        B, Sq, D = 4, 1, 512
        Hq, Hkv, Sk, Dh = 32, 8, 16384, 128
        assert Hq % Hkv == 0, (Hq, Hkv)
        return {
            "x": _w((lambda *s: torch.randn(*s, dtype=torch.bfloat16) * 0.05)(B, Sq, D)),
            "k_cache": _w((lambda *s: torch.randn(*s, dtype=torch.bfloat16) * 3.2)(B, Hkv, Sk, Dh)),
            "v_cache": _w((lambda *s: torch.randn(*s, dtype=torch.bfloat16) * 1.6)(B, Hkv, Sk, Dh)),
            "wq": _w((lambda *s: torch.randn(*s, dtype=torch.bfloat16) * 3.2)(D, Hq * Dh) * (D ** -0.5)),
            "wo": _w((lambda *s: torch.randn(*s, dtype=torch.bfloat16) * 1.6)(Hq * Dh, D) * ((Hq * Dh) ** -0.5)),
        }
    _A_in = _A_setup()

    def _B_setup():
        B, S, D, F = 4, 1, 512, 1792
        return {
            "x": _w((lambda *s: torch.randn(*s, dtype=torch.bfloat16) * 0.05)(B, S, D)),
            "w_gate": _w((lambda *s: torch.randn(*s, dtype=torch.bfloat16) * 0.05)(D, F)),
            "w_up": _w((lambda *s: torch.randn(*s, dtype=torch.bfloat16) * 0.05)(D, F)),
            "w_down": _w((lambda *s: torch.randn(*s, dtype=torch.bfloat16) * 0.05)(F, D)),
        }
    _B_in = _B_setup()

    return {
        "A_x": _A_in["x"],
        "A_k_cache": _A_in["k_cache"],
        "A_v_cache": _A_in["v_cache"],
        "A_wq": _A_in["wq"],
        "A_wo": _A_in["wo"],
        "B_x": _B_in["x"],
        "B_w_gate": _B_in["w_gate"],
        "B_w_up": _B_in["w_up"],
        "B_w_down": _B_in["w_down"],
    }

def reference(A_x, A_k_cache, A_v_cache, A_wq, A_wo, B_x, B_w_gate, B_w_up, B_w_down):
    def _A_ref(x, k_cache, v_cache, wq, wo):
        B, Sq, D = x.shape
        Hq, Dh = 32, 128
        Hkv, Sk = k_cache.shape[1], k_cache.shape[2]
        W = min(4096, max(256, Sk // 4))
        rep = Hq // Hkv
        q = (lambda x, *d: x.permute(*d))((x @ wq).reshape(B, Sq, Hq, Dh), 0, 2, 1, 3)
        k = (lambda x, n, axis: torch.repeat_interleave(x, n, dim=axis))(k_cache[:, :, Sk - W:, :], rep, axis=1)
        v = (lambda x, n, axis: torch.repeat_interleave(x, n, dim=axis))(v_cache[:, :, Sk - W:, :], rep, axis=1)
        scores = torch.einsum("bhqd,bhkd->bhqk", q, k) * (Dh ** -0.5)
        p = _softmax(scores, axis=-1)
        o = torch.einsum("bhqk,bhkd->bhqd", p, v)
        return (lambda x, *d: x.permute(*d))(o, 0, 2, 1, 3).reshape(B, Sq, Hq * Dh) @ wo

    def _B_ref(x, w_gate, w_up, w_down):
        g = _silu(x @ w_gate)
        u = x @ w_up
        return (g * u) @ w_down

    x = A_x
    xn = _layernorm(x, axis=-1)
    return x + _A_ref(xn, A_k_cache, A_v_cache, A_wq, A_wo) + _B_ref(xn, B_w_gate, B_w_up, B_w_down)
```

```python
import re

def vr(a, n=1):
    return f"v{a}" if n == 1 else f"v[{a}:{a+n-1}]"
def sr(a, n=1):
    return f"s{a}" if n == 1 else f"s[{a}:{a+n-1}]"

_reg_re = re.compile(r"^(-|\|)?(abs\()?([vsa])(?:(\d+)|\[(\d+):(\d+)\])\)?\|?$")
def parse_reg(tok):
    tok = tok.strip()
    if tok in ("vcc",): return [("s", "vcc")]
    if tok in ("exec",): return [("s", "exec")]
    if tok in ("m0",): return [("s", "m0")]
    if tok in ("vcc_lo", "vcc_hi"): return [("s", "vcc")]
    if tok in ("exec_lo", "exec_hi"): return [("s", "exec")]
    m = _reg_re.match(tok)
    if not m: return []
    k = m.group(3)
    if m.group(4) is not None:
        return [(k, int(m.group(4)))]
    return [(k, i) for i in range(int(m.group(5)), int(m.group(6)) + 1)]

TRANS = ("v_exp_f32", "v_log_f32", "v_rcp_f32", "v_rsq_f32", "v_sqrt_f32", "v_sin_f32", "v_cos_f32")

class Ins:
    def __init__(self, text):
        self.text = text
        t = text.split(";")[0].strip()
        self.is_label = t.endswith(":")
        self.is_dir = t.startswith(".")
        self.empty = (t == "")
        self.op = ""
        self.w = []; self.r = []
        if self.is_label or self.is_dir or self.empty: return
        parts = t.split(None, 1)
        self.op = op = parts[0]
        rest = parts[1] if len(parts) > 1 else ""
        ops = []; cur = ""; depth = 0
        for ch in rest:
            if ch in "[(": depth += 1
            if ch in "])": depth -= 1
            if ch == "," and depth == 0:
                ops.append(cur); cur = ""
            else: cur += ch
        ops.append(cur)
        if ops:
            last = ops[-1].strip().split()
            self.mods = " ".join(last[1:]) if last else ""
            ops[-1] = last[0] if last else ""
        ops = [o.strip() for o in ops]
        self.ops = ops
        R = [parse_reg(o) for o in ops]
        self.valu = op.startswith("v_") and not op.startswith("v_mfma")
        self.mfma = op.startswith("v_mfma")
        self.dpp = op.endswith("_dpp")
        self.perml = op.startswith("v_permlane")
        self.trans = any(op.startswith(x) for x in TRANS)
        self.vmem = op.startswith(("global_", "buffer_", "flat_"))
        self.ds = op.startswith("ds_")
        self.salu = op.startswith("s_")
        self.store = self.vmem and ("store" in op or "atomic" in op)
        self.lane = op.startswith(("v_readlane", "v_readfirstlane"))
        flat = lambda l: [x for y in l for x in y]
        if self.mfma:
            self.w = R[0]; self.a = R[1]; self.b = R[2]; self.c = R[3]; self.r = R[1] + R[2] + R[3]
        elif self.perml:
            self.w = R[0] + R[1]; self.r = R[0] + R[1]
        elif self.valu:
            self.w = R[0]; self.r = flat(R[1:])
            if op.startswith(("v_add_co", "v_addc_co", "v_sub_co", "v_subb_co")):
                self.w = R[0] + R[1]; self.r = flat(R[2:])
            if self.dpp or op.startswith(("v_fmac", "v_dot2c", "v_writelane")):
                self.r = self.r + R[0]
            if op.startswith("v_cndmask") and len(ops) == 3: self.r.append(("s", "vcc"))
            if op.startswith("v_cmpx"): self.w = self.w + [("s", "exec")]
        elif self.vmem:
            if self.store:
                self.r = flat(R)
                if op.startswith("global_"): self.data = R[1]
                else: self.data = R[0]
            elif "lds" in op or " lds" in (" " + self.mods):
                self.r = flat(R) + [("s", "m0")]
            else:
                self.w = R[0]; self.r = flat(R[1:])
                if "d16" in op: self.r = self.r + R[0]
        elif self.ds:
            if op.startswith(("ds_read", "ds_bpermute", "ds_permute", "ds_swizzle")) or "_rtn" in op:
                self.w = R[0]; self.r = flat(R[1:])
            else:
                self.r = flat(R)
        elif self.salu:
            if op.startswith(("s_cmp", "s_cbranch", "s_branch", "s_waitcnt", "s_nop", "s_barrier", "s_sleep", "s_setprio", "s_endpgm", "s_bitcmp")):
                self.r = flat(R)
            else:
                self.w = R[0] if R else []; self.r = flat(R[1:])
                if "saveexec" in op: self.w = self.w + [("s", "exec")]
    def states(self):
        if self.is_label or self.is_dir or self.empty: return 0
        if self.op == "s_nop": return int(self.ops[0], 0) + 1
        return 1

def mfma_passes(op):
    if "16x16x32" in op or "16x16x16" in op: return 4
    if "32x32x16" in op or "32x32x8" in op: return 8
    raise ValueError(op)

def need(prod, cons):
    n = 0
    pw = set(prod.w); cr = set(cons.r); cw = set(cons.w)
    pwv = {x for x in pw if x[0] in "va"}; pws = {x for x in pw if x[0] == "s"}
    if prod.valu:
        if pwv & cr:
            if cons.mfma: n = max(n, 2)
            if cons.dpp: n = max(n, 2)
            if cons.perml: n = max(n, 2)
            if cons.lane: n = max(n, 1)
            if prod.trans and cons.valu and not cons.trans: n = max(n, 1)
            if prod.trans and (cons.vmem or cons.ds): n = max(n, 1)
        if pws & cr:
            if cons.valu or cons.mfma: n = max(n, 2)
            if cons.lane: n = max(n, 4)
            if cons.vmem: n = max(n, 5)
        if ("s", "exec") in pw:
            if cons.dpp: n = max(n, 5)
            if cons.mfma or cons.perml or cons.lane: n = max(n, 4)
        if (("s", "vcc") in pw) and cons.op.startswith("s_cbranch_vcc"): n = max(n, 1)
    if prod.mfma:
        p = mfma_passes(prod.op)
        big = {4: 8, 8: 12}[p]
        if cons.mfma:
            if pw & (set(cons.a) | set(cons.b)): n = max(n, big)
            if pw & set(cons.c) and list(cons.c) != list(prod.w): n = max(n, big - 2)
            if pw & cw and not (pw & set(cons.c)): n = max(n, big - 2)
        elif cons.valu or cons.vmem or cons.ds:
            if pw & (cr | cw): n = max(n, big)
        if cons.valu and (set(prod.c) & cw): n = max(n, {4: 3, 8: 7}[p])
    if prod.salu and ("s", "m0") in pw and ("s", "m0") in cr and (cons.vmem or cons.ds): n = max(n, 1)
    if prod.salu and ("s", "exec") in pw and (cons.dpp or cons.perml): n = max(n, 1)
    if prod.vmem and prod.store and len(prod.data) >= 3 and (set(prod.data) & cw):
        n = max(n, 2 if cons.valu else 1)
    return n

def hazard_pass(lines, verbose=False):
    out = []; hist = []
    added = 0
    for t in lines:
        ins = Ins(t)
        if ins.is_label or ins.is_dir or ins.empty:
            out.append(t); continue
        dist = 0; req = 0
        for p in reversed(hist):
            nd = need(p, ins)
            if nd - dist > req: req = nd - dist
            dist += p.states()
            if dist >= 14: break
        if req > 0:
            nop = Ins(f"s_nop {req-1}")
            out.append(f"s_nop {req-1}"); hist.append(nop); added += req
        out.append(t); hist.append(ins)
        if ins.op in ("s_branch", "s_endpgm", "s_setpc_b64"): hist = []
    if verbose: print("hazard nops states added:", added)
    return out

class VM:
    def __init__(self, emit):
        self.q = []; self.emit = emit
    def issue(self, tag, store=False):
        self.q.append((tag, store))
    def wait(self, tag):
        idx = None
        for i, (t, s) in enumerate(self.q):
            if t == tag: idx = i
        if idx is None: return
        younger = sum(1 for (t, s) in self.q[idx+1:] if not s)
        self.emit(f"s_waitcnt vmcnt({min(younger, 63)})")
        if younger <= 63: self.q = self.q[idx+1:]
    def wait_all(self):
        self.emit("s_waitcnt vmcnt(0)"); self.q = []
```

```python
import sys, argparse
sys.path.insert(0, "gen")
from asmlib import *

KNAME = "parallel_sum__sliding_block_cached__swiglu_ffn__decode_kernel"
QP    = 0x000000
GP    = 0x040000
CLR   = 0x080000
EPOCH = 0x081000
ST    = 0x088000
IN1   = 0x090000
IN2   = 0x100000
L_PA, L_O, L_Q, L_M, L_MODE = 0, 4096, 12288, 13312, 13376
LDS_BYTES = 13440
LOG2E = 0x3fb8aa3b
SCALE = 0x3db504f3
EPS = 0x3727c5ac
SPIN = 1 << 18

HEADER = open("parallel_sum__sliding_block_cached__swiglu_ffn__decode.s.ref").read().split("; Override launch")[0]

def gen(diag=False, nt="nt", ntw="nt", nB0=12, nVf=12, swz="xorj", fast=1, pollsleep=0, prefetch=1, align=1,
        skip="", qkload=2, smload=2, pv0=19, pv1=27, walk=0):
    L = []
    A = L.append
    def stamp(k):
        if diag:
            A(f"s_memrealtime s[{64+2*k}:{65+2*k}]")
            if k == 1:
                for q in range(2, 16): A(f"s_mov_b64 s[{64+2*q}:{65+2*q}], 0")
    uid = [0]
    def lab(p):
        uid[0] += 1
        return f"L_{p}_{uid[0]}"
    DPPF = "row_mask:0xf bank_mask:0xf"
    sX, sK, sV, sWQ, sWO, sG, sU, sWD, sOUT, sDBG, sWS = (f"s[{a}:{a+1}]" for a in (8,10,12,14,16,20,22,24,26,28,30))
    W_, XX, J_, B_, S_ = "s3", "s4", "s5", "s6", "s7"
    sPITCH, sCB, sKH, sFB, sHB = "s32", "s33", "s34", "s35", "s36"
    sSELLO, sSELHI, sHI = "s37", "s38", "s39"
    sT0, sT1, sT2, sT3 = "s40", "s41", "s42", "s43"
    sSPIN = "s44"; sMODE = "s45"
    sPK = "s[46:47]"
    sSAVE = "s[48:49]"
    sTB = "s[50:51]"
    sRB = "s52"; sL2E = "s53"; sTAG = "s56"; sNOA = "s57"

    def unpack(lo, hi, src):
        A(f"v_lshlrev_b32 v{lo}, 16, v{src}")
        A(f"v_and_b32 v{hi}, {sHI}, v{src}")
    def rows_reduce(op, v, t):
        A(f"v_mov_b32 v{t}, v{v}")
        A(f"v_permlane16_swap_b32 v{v}, v{t}")
        A(f"{op} v{v}, v{v}, v{t}")
        A(f"v_mov_b32 v{t}, v{v}")
        A(f"v_permlane32_swap_b32 v{v}, v{t}")
        A(f"{op} v{v}, v{v}, v{t}")
    def max_tree_u32(dst, regs):
        regs = list(regs)
        A(f"v_max3_u32 v{dst}, v{regs[0]}, v{regs[1]}, v{regs[2]}")
        regs = regs[3:]
        while len(regs) >= 2:
            A(f"v_max3_u32 v{dst}, v{dst}, v{regs[0]}, v{regs[1]}"); regs = regs[2:]
        if regs: A(f"v_max_u32 v{dst}, v{dst}, v{regs[0]}")
    def poll(loads, regs, tmp, first_issued=False, tagged=False):
        lp, dn = lab("poll"), lab("pdone")
        def check():
            r = list(regs)
            if tagged:
                if len(r) == 1:
                    A(f"v_cmp_ne_u32 vcc, {sTAG}, v{r[0]}")
                else:
                    A(f"v_xor_b32 v{tmp}, {sTAG}, v{r[0]}")
                    for q in r[1:]: A(f"v_bitop3_b32 v{tmp}, v{q}, {sTAG}, v{tmp} bitop3:0xbe")
                    A(f"v_cmp_ne_u32 vcc, 0, v{tmp}")
            else:
                max_tree_u32(tmp, r)
                A(f"v_cmp_eq_u32 vcc, -1, v{tmp}")
        A(f"s_mov_b32 {sSPIN}, {SPIN}")
        if first_issued:
            chk = lab("pchk"); A(f"s_branch {chk}")
        A(f"{lp}:")
        for l in loads: A(l)
        A("s_waitcnt vmcnt(0)")
        if first_issued: A(f"{chk}:")
        check()
        A(f"s_cbranch_vccz {dn}")
        A("s_mov_b64 exec, vcc")
        if pollsleep: A(f"s_sleep {pollsleep}")
        A(f"s_sub_u32 {sSPIN}, {sSPIN}, 1")
        A(f"s_cbranch_scc0 {lp}")
        A(f"{dn}:")
        A("s_mov_b64 exec, -1")
    def mstore(instrs):
        if not fast:
            for i in instrs: A(i + " sc1")
            return
        sl, dn = lab("slow"), lab("sdone")
        A(f"s_cbranch_scc0 {sl}")
        for i in instrs: A(i)
        A(f"s_branch {dn}")
        A(f"{sl}:")
        for i in instrs: A(i + " sc1")
        A(f"{dn}:")
    def consts():
        A(f"s_mov_b32 {sHI}, 0xffff0000")
        A(f"s_mov_b32 {sSELLO}, 0x05040100"); A(f"s_mov_b32 {sSELHI}, 0x07060302")
        A(f"s_mov_b32 {sL2E}, {LOG2E:#x}")

    A(HEADER.rstrip())
    A(f"; @launch grid=(256,1,1) block=(512,1,1) lds={LDS_BYTES}")
    A('.amdgcn_target "amdgcn-amd-amdhsa--gfx950"')
    A(".text")
    if align:
        A(".p2align 12"); A(f".fill {0xD00//4}, 4, 0xbf810000")
    A(f".globl {KNAME}"); A(".p2align 8"); A(f".type {KNAME},@function"); A(f"{KNAME}:")
    stamp(0)
    A("s_cmp_ge_u32 s2, 256"); A("s_cbranch_scc1 L_end")
    A("s_load_dwordx16 s[8:23], s[0:1], 0")
    A("s_load_dwordx8 s[24:31], s[0:1], 64")
    A("v_lshrrev_b32 v1, 6, v0")
    A("v_and_b32 v0, 63, v0")
    A(f"v_readfirstlane_b32 {W_}, v1")
    A(f"s_and_b32 {XX}, s2, 7")
    A(f"s_lshr_b32 {J_}, s2, 3")
    A("v_and_b32 v2, 15, v0")
    A("v_lshrrev_b32 v3, 4, v0")
    A("v_bfe_u32 v4, v0, 2, 2")
    A("v_and_b32 v5, 3, v0")
    A(f"s_lshr_b32 {B_}, {J_}, 3"); A(f"s_and_b32 {S_}, {J_}, 7")
    A(f"s_cmp_ge_u32 {W_}, 4"); A("s_cbranch_scc1 L_stream")

    vm = VM(A)
    X, XA, T, U, AF, BF, D = 16, 32, 40, 72, 104, 112, 144
    A(f"s_and_b32 {sKH}, {J_}, 1")
    A(f"s_lshr_b32 {sT0}, {J_}, 1")
    A(f"s_lshl_b32 {sT1}, {XX}, 3"); A(f"s_add_u32 {sT1}, {sT1}, {sT0}")
    A(f"s_mul_i32 {sFB}, {XX}, 7"); A(f"s_add_u32 {sFB}, {sFB}, 1"); A(f"s_lshr_b32 {sFB}, {sFB}, 1")
    A(f"s_bfe_u32 {sT2}, {J_}, 0x20002"); A(f"s_add_u32 {sT2}, {sT2}, {sFB}")
    A(f"s_cmp_lt_u32 {J_}, 16")
    A(f"s_cselect_b32 {sCB}, {sT1}, {sT2}")
    A(f"s_movk_i32 {sT3}, 3584")
    A(f"s_cselect_b32 {sPITCH}, 8192, {sT3}")
    A("v_lshl_add_u32 v6, v3, 2, v5")
    A("v_lshlrev_b32 v6, 4, v6")
    A("v_lshl_add_u32 v6, v4, 10, v6")
    A(f"s_lshl_b32 {sT0}, {sKH}, 2"); A(f"s_add_u32 {sT0}, {sT0}, {W_}"); A(f"s_lshl_b32 {sT0}, {sT0}, 6")
    A(f"v_lshl_add_u32 v7, v3, 4, {sT0}")
    A("v_lshlrev_b32 v8, 1, v7")
    A("v_lshl_add_u32 v8, v4, 10, v8")
    A(f"s_lshl_b32 {sT1}, {sCB}, 7")
    A(f"v_lshl_add_u32 v9, v2, 3, {sT1}")
    A(f"v_mad_u32_u24 v9, v7, {sPITCH}, v9")
    A(f"s_getreg_b32 {sHB}, hwreg(HW_REG_XCC_ID, 0, 4)")
    A(f"s_bitset1_b32 {sHB}, 7")
    A(f"s_lshl_b32 {sT2}, {XX}, 5"); A(f"s_add_u32 {sT3}, {sT2}, {J_}")
    A(f"v_mov_b32 v10, {sT3}"); A(f"v_mov_b32 v11, {sHB}")
    A("v_and_b32 v12, 7, v0")
    A(f"v_lshl_add_u32 v12, v12, 2, {sT2}")
    A(f"s_and_b32 {sNOA}, s2, 0xe1")
    A(f"s_bitcmp1_b32 {J_}, 1")
    A("s_waitcnt lgkmcnt(0)")
    A(f"s_cselect_b64 {sTB}, {sU}, {sG}")
    A(f"s_cmp_lt_u32 {J_}, 16")
    A(f"s_cselect_b64 {sTB}, {sWQ}, {sTB}")
    A(f"global_store_byte v10, v11, {sDBG}")
    A(f"s_load_dword {sTAG}, {sWS}, {EPOCH:#x}")
    for i in range(4):
        A(f"global_load_dwordx4 {vr(X+4*i,4)}, v6, {sX} offset:{256*i}"); vm.issue(("x", i))
    A(f"s_cmp_eq_u32 {sNOA}, 0xe1"); A("s_cbranch_scc1 L_noA")
    for i in range(2):
        A(f"global_load_dwordx4 {vr(XA+4*i,4)}, v8, {sX} offset:{16*i}"); vm.issue(("xa", i))
    for jj in range(16):
        A(f"global_load_dwordx2 {vr(T+2*jj,2)}, v9, {sTB} {ntw}"); vm.issue(("t", jj))
        if jj < 15: A(f"v_add_u32 v9, {sPITCH}, v9")
    stamp(1)
    consts()
    vm.wait(("x", 3))
    A(f"global_load_dword v14, v12, {sDBG} sc1"); vm.issue("mode")
    stamp(2)
    for i in range(16): unpack(U+2*i, U+2*i+1, X+i)
    for c in range(4):
        A(f"v_pk_add_f32 {vr(X+2*c,2)}, {vr(U+8*c,2)}, {vr(U+8*c+2,2)}")
    for k in (4, 6):
        for c in range(4):
            A(f"v_pk_add_f32 {vr(X+2*c,2)}, {vr(X+2*c,2)}, {vr(U+8*c+k,2)}")
    def fold4(dst):
        A(f"v_pk_add_f32 {vr(X,2)}, {vr(X,2)}, {vr(X+2,2)}")
        A(f"v_pk_add_f32 {vr(X+4,2)}, {vr(X+4,2)}, {vr(X+6,2)}")
        A(f"v_pk_add_f32 {vr(X,2)}, {vr(X,2)}, {vr(X+4,2)}")
        A(f"v_add_f32 v{dst}, v{X}, v{X+1}")
        A(f"v_add_f32_dpp v{dst}, v{dst}, v{dst} quad_perm:[1,0,3,2] {DPPF}")
        A(f"v_add_f32_dpp v{dst}, v{dst}, v{dst} quad_perm:[2,3,0,1] {DPPF}")
        rows_reduce("v_add_f32", dst, X+8)
        A(f"v_mul_f32 v{dst}, 0x3b000000, v{dst}")
    fold4(10)
    for i in range(16):
        A(f"v_pk_add_f32 {vr(U+2*i,2)}, {vr(U+2*i,2)}, v[10:11] op_sel_hi:[1,0] neg_lo:[0,1] neg_hi:[0,1]")
    for c in range(4):
        A(f"v_pk_mul_f32 {vr(X+2*c,2)}, {vr(U+8*c,2)}, {vr(U+8*c,2)}")
    for k in (2, 4, 6):
        for c in range(4):
            A(f"v_pk_fma_f32 {vr(X+2*c,2)}, {vr(U+8*c+k,2)}, {vr(U+8*c+k,2)}, {vr(X+2*c,2)}")
    fold4(11)
    A("v_cvt_pk_bf16_f32 v12, v10, v11")
    unpack(10, 11, 12)
    A(f"v_add_f32 v11, {EPS:#x}, v11")
    A("v_cvt_pk_bf16_f32 v11, v11, v11")
    A("v_lshlrev_b32 v11, 16, v11")
    A("v_sqrt_f32 v11, v11")
    A("v_cvt_pk_bf16_f32 v11, v11, v11")
    A("v_lshlrev_b32 v11, 16, v11")
    A("v_rcp_f32 v12, v11")
    vm.wait(("xa", 1))
    for i in range(8): unpack(U+2*i, U+2*i+1, XA+i)
    for i in range(8):
        A(f"v_pk_add_f32 {vr(U+2*i,2)}, {vr(U+2*i,2)}, v[10:11] op_sel_hi:[1,0] neg_lo:[0,1] neg_hi:[0,1]")
    for i in range(8): A(f"v_cvt_pk_bf16_f32 v{XA+i}, v{U+2*i}, v{U+2*i+1}")
    for i in range(8): unpack(U+2*i, U+2*i+1, XA+i)
    for i in range(8):
        A(f"v_pk_mul_f32 {vr(U+2*i,2)}, {vr(U+2*i,2)}, v[12:13] op_sel_hi:[1,0]")
    for i in range(8): A(f"v_cvt_pk_bf16_f32 v{AF+i}, v{U+2*i}, v{U+2*i+1}")
    stamp(3)
    for blk in range(2):
        vm.wait(("t", 8*blk+7))
        for e in range(4):
            for r in range(4):
                A(f"v_perm_b32 v{BF+16*blk+4*e+r}, v{T+2*(8*blk+2*r+1)+(e>>1)}, v{T+2*(8*blk+2*r)+(e>>1)}, {sSELHI if e&1 else sSELLO}")
        for e in range(4):
            c = "0" if blk == 0 else vr(D+4*e,4)
            A(f"v_mfma_f32_16x16x32_bf16 {vr(D+4*e,4)}, {vr(AF+4*blk,4)}, {vr(BF+16*blk+4*e,4)}, {c}")
    A(f"s_lshl_b32 {sT0}, {W_}, 10")
    A(f"v_lshl_add_u32 v10, v0, 4, {sT0}")
    A(f"ds_write2_b32 v10, v{D}, v{D+4} offset0:0 offset1:1")
    A(f"ds_write2_b32 v10, v{D+8}, v{D+12} offset0:2 offset1:3")
    A("s_branch L_B0s")
    A("L_noA:")
    stamp(1)
    consts()
    A("s_waitcnt vmcnt(0)")
    A(f"global_load_dword v14, v12, {sDBG} sc1")
    A("L_B0s:")
    A("s_waitcnt lgkmcnt(0)")
    stamp(4)
    A("s_barrier")
    stamp(5)
    A(f"s_mul_i32 {sTAG}, {sTAG}, 0x0019660d"); A(f"s_add_u32 {sTAG}, {sTAG}, 0x3c6ef35f")
    A(f"s_mul_i32 {sT0}, {sHB}, 0x01010101")
    A(f"s_cmp_eq_u32 {W_}, 1"); A("s_cbranch_scc1 L_w1a")
    A(f"s_cmp_eq_u32 {W_}, 2"); A("s_cbranch_scc1 L_B1s")
    A("s_waitcnt vmcnt(0)")
    A(f"v_cmp_ne_u32 vcc, {sT0}, v14")
    A(f"s_mov_b32 {sMODE}, vcc_lo")
    A(f"s_cmp_eq_u32 {W_}, 3"); A("s_cbranch_scc1 L_clear")
    A(f"s_cmp_eq_u32 {sNOA}, 0xe1"); A("s_cbranch_scc1 L_qduty")
    A("v_lshlrev_b32 v10, 4, v0")
    for w in range(4): A(f"ds_read_b128 {vr(X+4*w,4)}, v10 offset:{L_PA+1024*w}")
    A(f"s_lshl_b32 {sT0}, {XX}, 15"); A(f"s_lshl_b32 {sT1}, {sKH}, 12"); A(f"s_add_u32 {sT1}, {sT0}, {sT1}")
    A(f"s_and_b32 {sT2}, {sCB}, 7"); A(f"s_lshl_b32 {sT2}, {sT2}, 9"); A(f"s_add_u32 {sT1}, {sT1}, {sT2}")
    A(f"v_lshl_add_u32 v11, v2, 4, {sT1}")
    A("v_lshl_add_u32 v11, v3, 13, v11")
    A("v_add_u32 v12, 256, v11")
    A(f"s_cmp_lt_u32 {J_}, 16"); A("s_cbranch_scc1 L_pubq")
    A(f"s_bfe_u32 {sT1}, {J_}, 0x20002"); A(f"s_lshl_b32 {sT1}, {sT1}, 13"); A(f"s_add_u32 {sT0}, {sT0}, {sT1}")
    A(f"s_and_b32 {sT1}, {J_}, 3"); A(f"s_lshl_b32 {sT1}, {sT1}, 8"); A(f"s_add_u32 {sT0}, {sT0}, {sT1}"); A(f"s_add_u32 {sT0}, {sT0}, {GP}")
    A(f"v_lshl_add_u32 v11, v4, 11, {sT0}")
    A("v_lshl_add_u32 v11, v3, 6, v11")
    A("v_lshl_add_u32 v11, v5, 4, v11")
    A("v_add_u32 v12, 1024, v11")
    A("L_pubq:")
    for i in range(4): A(f"v_mov_b32 v{XA+2*i+1}, {sTAG}")
    A(f"s_cmp_eq_u32 {sMODE}, 0")
    A("s_waitcnt lgkmcnt(0)")
    for h in range(2):
        A(f"v_pk_add_f32 {vr(X+2*h,2)}, {vr(X+2*h,2)}, {vr(X+4+2*h,2)}")
        A(f"v_pk_add_f32 {vr(X+8+2*h,2)}, {vr(X+8+2*h,2)}, {vr(X+12+2*h,2)}")
    for i in range(4): A(f"v_add_f32 v{XA+2*i}, v{X+i}, v{X+8+i}")
    if "p" not in skip:
        mstore([f"global_store_dwordx4 v11, {vr(XA,4)}, {sWS}", f"global_store_dwordx4 v12, {vr(XA+4,4)}, {sWS}"])
    A("s_waitcnt vmcnt(0)")
    A("L_qduty:")
    stamp(6)
    A(f"s_lshl_b32 {sT0}, {XX}, 2"); A(f"s_add_u32 {sT0}, {sT0}, {B_}"); A(f"s_lshl_b32 {sT0}, {sT0}, 13"); A(f"s_add_u32 {sT0}, {sT0}, {QP+4096}")
    A(f"v_lshl_add_u32 v10, v0, 4, {sT0}")
    if "q" not in skip:
        poll([f"global_load_dwordx4 {vr(U+4*i,4)}, v10, {sWS} offset:{1024*i-4096} sc1" for i in range(8)], range(U+1, U+32, 2), 11, tagged=True)
    for i in range(8): A(f"v_add_f32 v{U+2*i}, v{U+2*i}, v{U+16+2*i}")
    for h in range(4): A(f"v_cvt_pk_bf16_f32 v{X+h}, v{U+4*h}, v{U+4*h+2}")
    A("v_and_b32 v10, 32, v0"); A("v_and_b32 v11, 1, v3")
    A("v_add_u32 v10, v10, v11")
    A("v_lshl_add_u32 v10, v2, 1, v10")
    A("v_lshlrev_b32 v10, 2, v10")
    A(f"ds_write2st64_b32 v10, v{X}, v{X+1} offset0:{L_Q//256} offset1:{L_Q//256+1}")
    A(f"ds_write2st64_b32 v10, v{X+2}, v{X+3} offset0:{L_Q//256+2} offset1:{L_Q//256+3}")
    A("s_branch L_B1s")
    A("L_w1a:")
    if prefetch:
        A(f"s_cmp_lg_u32 {J_}, 31"); A("s_cbranch_scc1 L_B1s")
        A(f"s_getpc_b64 {sSAVE}")
        A("L_pc:")
        A("v_lshlrev_b32 v10, 7, v0")
        A("v_add_u32 v11, 0x2000, v10")
        A("v_min_u32 v10, L_end-L_pc, v10")
        A("v_min_u32 v11, L_end-L_pc, v11")
        A(f"global_load_dword v250, v10, {sSAVE}")
        A(f"global_load_dword v251, v11, {sSAVE}")
    A("s_branch L_B1s")
    A("L_clear:")
    A(f"v_mov_b32 v13, {sMODE}"); A(f"v_mov_b32 v15, {L_MODE}")
    A("ds_write_b32 v15, v13")
    for i in range(4): A(f"v_mov_b32 v{X+i}, -1")
    A(f"s_lshl_b32 {sT0}, {XX}, 15"); A(f"s_lshl_b32 {sT1}, {J_}, 6"); A(f"s_add_u32 {sT0}, {sT0}, {sT1}"); A(f"s_add_u32 {sT0}, {sT0}, {IN1}")
    A("v_lshrrev_b32 v10, 2, v0")
    A(f"v_lshl_add_u32 v10, v10, 11, {sT0}")
    A("v_lshl_add_u32 v10, v5, 4, v10")
    A(f"s_lshl_b32 {sT0}, {XX}, 12"); A(f"s_lshl_b32 {sT1}, {J_}, 5"); A(f"s_add_u32 {sT0}, {sT0}, {sT1}"); A(f"s_add_u32 {sT0}, {sT0}, {ST}")
    A("v_bfe_u32 v11, v0, 3, 2"); A("v_and_b32 v12, 7, v0")
    A(f"v_lshl_add_u32 v11, v11, 10, {sT0}")
    A("v_lshl_add_u32 v11, v12, 2, v11")
    A(f"s_lshl_b32 {sT1}, {XX}, 5"); A(f"s_add_u32 {sT1}, {sT1}, {J_}"); A(f"s_lshl_b32 {sT1}, {sT1}, 2"); A(f"s_add_u32 {sT1}, {sT1}, {CLR}")
    A(f"v_mov_b32 v12, {sT1}"); A(f"v_mov_b32 v13, {sTAG}")
    A(f"s_cmp_eq_u32 {sMODE}, 0")
    if "c" not in skip:
        mstore([f"global_store_dwordx4 v10, {vr(X,4)}, {sWS}", f"global_store_dword v11, v{X}, {sWS}"])
    A("s_waitcnt vmcnt(0)")
    A("s_mov_b64 exec, 1")
    mstore([f"global_store_dword v12, v13, {sWS}"])
    A("s_mov_b64 exec, -1")
    A("L_B1s:")
    A("s_waitcnt lgkmcnt(0)")
    stamp(7)
    A("s_barrier")
    AD, AO, AS, AH1, AH2, AOUT, AIN2, ALW, XV = 160, 161, 162, 163, 164, 165, 166, 167, 168
    STT, WD, WO, HF, WT, BD, BO, DH, OA, DO = 24, 28, 36, 52, 56, 64, 72, 88, 104, 112
    Y = 144
    A(f"s_lshl_b32 {sRB}, {XX}, 2"); A(f"s_add_u32 {sRB}, {sRB}, {B_}")
    A(f"s_lshl_b32 {sT3}, {sRB}, 2"); A(f"s_add_u32 {sT3}, {sT3}, {W_}"); A(f"s_lshl_b32 {sT3}, {sT3}, 11")
    A(f"s_lshl_b32 {sT0}, {XX}, 7"); A(f"s_add_u32 {sT0}, {sT0}, {CLR}")
    A("v_and_b32 v13, 31, v0")
    A(f"v_lshl_add_u32 v13, v13, 2, {sT0}")
    cl = [f"global_load_dword v{Y+8}, v13, {sWS} sc1"]
    A(f"s_add_u32 {sT0}, {sT3}, {GP}")
    A(f"v_lshl_add_u32 v10, v5, 8, {sT0}")
    A("v_lshl_add_u32 v10, v4, 6, v10")
    A("v_lshl_add_u32 v10, v3, 4, v10")
    hl = [f"global_load_dwordx4 {vr(Y+4*i,4)}, v10, {sWS} offset:{1024*i} sc1" for i in range(2)]
    A(f"v_mov_b32 v{HF}, 0"); A(f"v_mov_b32 v{HF+1}, 0")
    A(f"s_and_b32 {sNOA}, s2, 0xc1")
    A(f"s_cmp_eq_u32 {sNOA}, 0xc1"); A("s_cbranch_scc1 L_noh")
    if "h" not in skip:
        poll(cl + hl, [Y+8, Y+1, Y+3, Y+5, Y+7], 11, tagged=True)
    for i in range(4): A(f"v_add_f32_dpp v{X+i}, v{Y+2*i}, v{Y+2*i} quad_perm:[1,0,3,2] {DPPF}")
    for i in range(2): A(f"v_cvt_pk_bf16_f32 v{X+4+i}, v{X+2*i}, v{X+2*i+1}")
    for i in range(2): unpack(X+2*i, X+2*i+1, X+4+i)
    for i in range(4): A(f"v_mul_f32 v{X+4+i}, {sL2E}, v{X+i}")
    for i in range(4): A(f"v_exp_f32 v{X+4+i}, -v{X+4+i}")
    for i in range(4): A(f"v_add_f32 v{X+4+i}, 1.0, v{X+4+i}")
    for i in range(4): A(f"v_rcp_f32 v{X+4+i}, v{X+4+i}")
    for i in range(4): A(f"v_mul_f32 v{X+4+i}, v{X+i}, v{X+4+i}")
    for i in range(2): A(f"v_cvt_pk_bf16_f32 v{Y+i}, v{X+4+2*i}, v{X+5+2*i}")
    for i in range(2): unpack(X+4+2*i, X+5+2*i, Y+i)
    for i in range(4): A(f"v_mul_f32_dpp v{X+4+i}, v{X+i}, v{X+4+i} quad_perm:[2,3,0,1] {DPPF}")
    A("v_cmp_eq_u32 vcc, 0, v5")
    for i in range(2): A(f"v_cvt_pk_bf16_f32 v{HF+i}, v{X+4+2*i}, v{X+5+2*i}")
    for i in range(2): A(f"v_cndmask_b32 v{HF+i}, 0, v{HF+i}, vcc")
    A("s_branch L_hdone")
    A("L_noh:")
    if "h" not in skip:
        poll(cl, [Y+8], 11, tagged=True)
    A("L_hdone:")
    A(f"s_lshl_b32 {sT1}, {S_}, 7")
    A(f"v_lshl_add_u32 v10, v2, 3, {sT1}")
    A(f"s_add_u32 {sT2}, {sFB}, {B_}"); A(f"s_lshl_b32 {sT2}, {sT2}, 2"); A(f"s_add_u32 {sT2}, {sT2}, {W_}"); A(f"s_lshl_b32 {sT2}, {sT2}, 14")
    A(f"v_lshl_add_u32 v11, v3, 12, {sT2}")
    A(f"v_add_u32 v{AD}, v11, v10")
    A(f"s_lshl_b32 {sT2}, {sRB}, 7")
    A(f"s_lshl_b32 {sT0}, {W_}, 1"); A(f"s_add_u32 {sT2}, {sT2}, {sT0}")
    A("v_and_b32 v11, 1, v3"); A("v_lshrrev_b32 v12, 1, v3")
    A("v_lshl_add_u32 v11, v11, 6, v12")
    A(f"v_add_u32 v11, {sT2}, v11")
    A(f"v_lshl_add_u32 v{AO}, v11, 10, v10")
    A(f"s_lshl_b32 {sT2}, {sRB}, 10"); A(f"s_add_u32 {sT2}, {sT2}, {ST}")
    A(f"v_lshl_add_u32 v{AS}, v0, 4, {sT2}")
    A(f"s_add_u32 {sT2}, {sT3}, {IN1}")
    A(f"v_lshl_add_u32 v11, v4, 9, {sT2}")
    A("v_lshl_add_u32 v11, v5, 6, v11")
    A(f"v_lshl_add_u32 v{AH1}, v3, 4, v11")
    A(f"s_lshl_b32 {sT2}, {S_}, 14"); A(f"s_lshr_b32 {sT0}, {W_}, 1"); A(f"s_lshl_b32 {sT1}, {sT0}, 11"); A(f"s_add_u32 {sT2}, {sT2}, {sT1}")
    A(f"s_lshl_b32 {sT1}, {sRB}, 6"); A(f"s_add_u32 {sT2}, {sT2}, {sT1}"); A(f"s_add_u32 {sT2}, {sT2}, {IN2}")
    A(f"v_lshl_add_u32 v11, v4, 12, {sT2}")
    A("v_lshl_add_u32 v11, v5, 4, v11")
    A(f"v_lshl_add_u32 v{AH2}, v3, 17, v11")
    A(f"s_lshl_b32 {sT1}, {W_}, 10")
    A(f"v_lshl_add_u32 v{ALW}, v0, 4, {sT1}")
    A(f"s_lshl_b32 {sT0}, {sT0}, 3")
    A(f"v_lshl_add_u32 v{XV+1}, v0, 4, {sT0}")
    A(f"s_lshr_b32 {sT0}, s2, 1"); A(f"s_lshl_b32 {sT0}, {sT0}, 4"); A(f"s_and_b32 {sT1}, s2, 1"); A(f"s_lshl_b32 {sT1}, {sT1}, 1"); A(f"s_add_u32 {sT0}, {sT0}, {sT1}")
    A("v_lshrrev_b32 v11, 5, v0")
    A("v_lshl_add_u32 v11, v5, 2, v11")
    A(f"v_add_lshl_u32 v{AOUT}, v11, {sT0}, 1")
    A(f"s_lshl_b32 {sT0}, s2, 11"); A(f"s_add_u32 {sT0}, {sT0}, {IN2}")
    A(f"v_lshl_add_u32 v{AIN2}, v0, 4, {sT0}")
    A(f"s_cmp_lg_u32 {W_}, 1"); A("s_cbranch_scc1 L_nox")
    A(f"global_load_ushort v{XV}, v{AOUT}, {sX}")
    A("L_nox:")
    for r in range(8): A(f"v_mov_b32 v{WD+r}, 0")
    A(f"s_movk_i32 {sT0}, 0x2000")
    A(f"s_cmp_eq_u32 {sNOA}, 0xc1")
    stamp(8)
    A("s_barrier")
    vm = VM(A)
    stl = f"global_load_dwordx4 {vr(STT,4)}, v{AS}, {sWS} sc1"
    h1l = [f"global_load_dwordx4 {vr(OA+4*sh,4)}, v{AH1}, {sWS} offset:{256*sh} sc1" for sh in range(2)]
    A(stl); vm.issue("st")
    A("s_cbranch_scc1 L_nowd")
    for jj in range(4):
        A(f"global_load_dwordx2 {vr(WD+2*jj,2)}, v{AD}, {sWD} offset:{1024*jj} {ntw}")
    A("L_nowd:")
    for jj in range(8):
        A(f"global_load_dwordx2 {vr(WO+2*jj,2)}, v{AO}, {sWO} {ntw}"); vm.issue(("wo", jj))
        if jj < 7: A(f"v_add_u32 v{AO}, {sT0}, v{AO}")
    stamp(9)
    A("s_barrier")
    vm.wait("st")
    poll([stl], range(STT, STT+4), 11, first_issued=True)
    m0, l0, m1, l1 = STT, STT+1, STT+2, STT+3
    A(f"v_max_f32 v10, v{m0}, v{m1}")
    def wdperm(e):
        for r in range(2):
            A(f"v_perm_b32 v{BD+2*e+r}, v{WD+2*(2*r+1)+(e>>1)}, v{WD+2*(2*r)+(e>>1)}, {sSELHI if e&1 else sSELLO}")
    wdperm(0)
    A(f"v_max_f32_dpp v10, v10, v10 quad_perm:[1,0,3,2] {DPPF}")
    wdperm(1)
    A(f"v_max_f32_dpp v11, v10, v10 quad_perm:[2,3,0,1] {DPPF}")
    wdperm(2)
    A(f"v_max_f32_dpp v11, v11, v11 row_ror:4 {DPPF}")
    wdperm(3)
    A(f"v_max_f32_dpp v11, v11, v11 row_ror:8 {DPPF}")
    A(f"v_sub_f32 v{m0}, v{m0}, v11"); A(f"v_sub_f32 v{m1}, v{m1}, v11"); A("v_sub_f32 v10, v10, v11")
    A(f"v_mul_f32 v{m0}, {sL2E}, v{m0}"); A(f"v_mul_f32 v{m1}, {sL2E}, v{m1}"); A(f"v_mul_f32 v10, {sL2E}, v10")
    A(f"v_exp_f32 v{m0}, v{m0}"); A(f"v_exp_f32 v{m1}, v{m1}"); A("v_exp_f32 v10, v10")
    A(f"v_mul_f32 v12, v{m0}, v{l0}")
    A(f"v_fmac_f32 v12, v{m1}, v{l1}")
    def dhm(e): A(f"v_mfma_f32_16x16x16_bf16 {vr(DH+4*e,4)}, {vr(HF,2)}, {vr(BD+2*e,2)}, 0")
    dhm(0)
    A(f"v_add_f32_dpp v12, v12, v12 quad_perm:[1,0,3,2] {DPPF}")
    dhm(1)
    A(f"v_add_f32_dpp v12, v12, v12 quad_perm:[2,3,0,1] {DPPF}")
    dhm(2)
    A(f"v_add_f32_dpp v12, v12, v12 row_ror:4 {DPPF}")
    dhm(3)
    A(f"v_add_f32_dpp v12, v12, v12 row_ror:8 {DPPF}")
    A("v_rcp_f32 v12, v12")
    A("v_mul_f32 v10, v10, v12")
    for s in range(8): A(f"v_mov_b32_dpp v{WT+s}, v10 row_newbcast:{2*s} {DPPF}")
    stamp(10)
    vm.wait(("wo", 7))
    for l in h1l: A(l)
    for e in range(4):
        for r in range(4):
            A(f"v_perm_b32 v{BO+4*e+r}, v{WO+2*(2*r+1)+(e>>1)}, v{WO+2*(2*r)+(e>>1)}, {sSELHI if e&1 else sSELLO}")
    stamp(11)
    vm.wait_all()
    poll(h1l, range(OA, OA+8), 11, first_issued=True)
    stamp(12)
    for sh in range(2):
        for e in range(4):
            A(f"v_mfma_f32_16x16x32_bf16 {vr(DO+16*sh+4*e,4)}, {vr(OA+4*sh,4)}, {vr(BO+4*e,4)}, 0")
    for sh in range(2):
        for hh in range(2):
            for e in range(4):
                A(f"v_pk_fma_f32 {vr(DH+4*e,2)}, {vr(DO+16*sh+4*e+2*hh,2)}, {vr(WT+4*sh+2*hh,2)}, {vr(DH+4*e,2)}")
    for e in range(4): A(f"v_add_f32 v{STT+e}, v{DH+4*e}, v{DH+4*e+1}")
    A(f"ds_write_b128 v{ALW}, {vr(STT,4)} offset:{L_PA}")
    A(f"s_bitcmp1_b32 {W_}, 0")
    A("s_waitcnt lgkmcnt(0)")
    A("s_barrier")
    A("s_cbranch_scc1 L_odd")
    for w in range(4): A(f"ds_read_b64 {vr(DO+2*w,2)}, v{XV+1} offset:{L_PA+1024*w}")
    A(f"v_mov_b32 v{STT+1}, {sTAG}"); A(f"v_mov_b32 v{STT+3}, {sTAG}")
    A("s_waitcnt lgkmcnt(0)")
    A(f"v_pk_add_f32 {vr(DO,2)}, {vr(DO,2)}, {vr(DO+2,2)}")
    A(f"v_pk_add_f32 {vr(DO+4,2)}, {vr(DO+4,2)}, {vr(DO+6,2)}")
    A(f"v_add_f32 v{STT}, v{DO}, v{DO+4}")
    A(f"v_add_f32 v{STT+2}, v{DO+1}, v{DO+5}")
    A(f"global_store_dwordx4 v{AH2}, {vr(STT,4)}, {sWS} sc1")
    stamp(13)
    A("s_branch L_fin")
    A("L_odd:")
    A(f"s_cmp_lg_u32 {W_}, 1"); A("s_cbranch_scc1 L_fin")
    G = 16
    poll([f"global_load_dwordx4 {vr(G+4*i,4)}, v{AIN2}, {sWS} offset:{1024*i} sc1" for i in range(2)], [G+1, G+3, G+5, G+7], 13, tagged=True)
    stamp(13)
    A(f"v_add_f32 v{G}, v{G}, v{G+4}")
    A(f"v_add_f32 v{G+2}, v{G+2}, v{G+6}")
    A(f"v_lshlrev_b32 v{XV}, 16, v{XV}")
    A(f"v_permlane32_swap_b32 v{G}, v{G+2}")
    A(f"v_add_f32 v{G}, v{G}, v{G+2}")
    A(f"v_add_f32_dpp v{G}, v{G}, v{G} row_ror:8 {DPPF}")
    A(f"v_add_f32_dpp v{G}, v{G}, v{G} row_ror:4 {DPPF}")
    A(f"v_mov_b32 v{G+1}, v{G}")
    A(f"v_permlane16_swap_b32 v{G}, v{G+1}")
    A(f"v_add_f32 v{G}, v{G}, v{G+1}")
    A(f"v_add_f32 v{G}, v{G}, v{XV}")
    A(f"v_cvt_pk_bf16_f32 v{G}, v{G}, v{G}")
    A("s_mov_b32 exec_lo, 0xf"); A("s_mov_b32 exec_hi, 0xf")
    A(f"global_store_short v{AOUT}, v{G}, {sOUT}")
    A("s_cmp_lg_u32 s2, 0"); A("s_cbranch_scc1 L_fin")
    A("s_mov_b64 exec, 1")
    A(f"v_mov_b32 v10, {EPOCH}"); A(f"v_mov_b32 v11, {sTAG}")
    A(f"global_store_dword v10, v11, {sWS}")
    A("s_branch L_fin")

    A("L_stream:")
    vm = VM(A)
    KR, VF, S, Q, QD, O, P, TM = 16, 144, 192, 200, 204, 236, 244, 248
    def kreg(i): return KR + 4*i
    def vreg(i): return VF + 4*i if i < nVf else KR + 4*(i - nVf)
    AT = [KR + 4*(32 - nVf), KR + 4*(32 - nVf) + 16]
    assert nVf >= 8 and nVf <= 12
    A(f"s_sub_u32 {W_}, {W_}, 4")
    A(f"s_lshl_b32 {sT0}, {B_}, 3"); A(f"s_add_u32 {sT0}, {sT0}, {XX}"); A(f"s_lshl_b32 {sT0}, {sT0}, 22")
    A(f"s_lshl_b32 {sT1}, {S_}, 17"); A(f"s_add_u32 {sT0}, {sT0}, {sT1}"); A(f"s_add_u32 {sT0}, {sT0}, {12288*256}")
    A(f"s_lshl_b32 {sT1}, {W_}, 10")
    if swz == "xorj":
        A(f"s_lshl_b32 {sT2}, {J_}, 12"); A(f"s_add_u32 {sT1}, {sT1}, {sT2}")
    elif swz == "xor7":
        A(f"s_add_u32 {sT2}, {J_}, {XX}"); A(f"s_and_b32 {sT2}, {sT2}, 7"); A(f"s_lshl_b32 {sT2}, {sT2}, 12"); A(f"s_add_u32 {sT1}, {sT1}, {sT2}")
    A(f"v_lshl_add_u32 v6, v0, 4, {sT1}")
    A(f"v_lshl_add_u32 v7, v5, 4, {sT1}")
    A("v_lshl_add_u32 v7, v4, 8, v7")
    A("v_lshl_add_u32 v7, v3, 6, v7")
    A("s_waitcnt lgkmcnt(0)")
    A(f"s_add_u32 s10, s10, {sT0}"); A("s_addc_u32 s11, s11, 0")
    A(f"s_add_u32 s12, s12, {sT0}"); A("s_addc_u32 s13, s13, 0")
    stamp(1)
    nld = [0]
    def load(which, i):
        t = 8 + (nld[0] & 1); nld[0] += 1
        src, base, r = (7, sK, kreg(i)) if which == "K" else (6, sV, vreg(i))
        if i == 0: t = src
        else: A(f"v_xor_b32 v{t}, {4096*i:#x}, v{src}")
        A(f"global_load_dwordx4 {vr(r,4)}, v{t}, {base} {nt}"); vm.issue((which, i))
    for i in range(nB0): load("K", i)
    stamp(4)
    A("s_barrier")
    stamp(5)
    for i in range(nB0, 32): load("K", i)
    for i in range(nVf): load("V", i)
    consts()
    A("v_lshlrev_b32 v10, 8, v5")
    A("v_lshl_add_u32 v10, v3, 6, v10")
    A("v_lshl_add_u32 v10, v4, 4, v10")
    A(f"v_mov_b32 v11, {L_MODE}")
    stamp(6)
    A("s_barrier")
    stamp(7)
    A(f"ds_read_b128 {vr(Q,4)}, v10 offset:{L_Q}")
    A("ds_read_b32 v11, v11")
    A("s_waitcnt lgkmcnt(0)")
    A(f"v_readfirstlane_b32 {sMODE}, v11")
    def extract(i):
        d = QD + 4*(i % 8); s = S + (i & 1) + 2*(i >> 3); t = (i >> 1) & 3
        ops = []; first = True
        for v in range(4):
            if v == t: continue
            n = 4*((t - v) % 4)
            src1 = d + t if first else s
            ops.append(f"v_add_f32_dpp v{s}, v{d+v}, v{src1} row_ror:{n} row_mask:0xf bank_mask:{1<<t:#x}")
            first = False
        return ops
    def qk(i):
        vm.wait(("K", i))
        A(f"v_mfma_f32_16x16x32_bf16 {vr(QD+4*(i%8),4)}, {vr(kreg(i),4)}, {vr(Q,4)}, 0")
    for i in range(4): qk(i)
    for i in range(0, 32, 2):
        a, b = extract(i), extract(i+1)
        A(a[0]); A(b[0])
        if i + 4 < 32: qk(i+4)
        A(a[1]); A(b[1])
        if i + 5 < 32: qk(i+5)
        A(a[2]); A(b[2])
    nv = nVf
    stamp(2)
    for _ in range(qkload): load("V", nv); nv += 1
    stamp(3)
    A(f"s_mov_b32 s46, {SCALE:#x}"); A(f"s_mov_b32 s47, {SCALE:#x}")
    for i in range(4): A(f"v_cvt_pk_bf16_f32 v{P+i}, v{S+2*i}, v{S+2*i+1}")
    for i in range(4): unpack(S+2*i, S+2*i+1, P+i)
    for i in range(4): A(f"v_pk_mul_f32 {vr(S+2*i,2)}, {vr(S+2*i,2)}, {sPK}")
    for i in range(4): A(f"v_cvt_pk_bf16_f32 v{P+i}, v{S+2*i}, v{S+2*i+1}")
    for i in range(4): unpack(S+2*i, S+2*i+1, P+i)
    M_, Lr = TM, TM+1
    A(f"v_max3_f32 v{M_}, v{S}, v{S+1}, v{S+2}")
    A(f"v_max3_f32 v{TM+2}, v{S+3}, v{S+4}, v{S+5}")
    A(f"v_max3_f32 v{M_}, v{M_}, v{S+6}, v{S+7}")
    A(f"v_max_f32 v{M_}, v{M_}, v{TM+2}")
    A(f"v_max_f32_dpp v{M_}, v{M_}, v{M_} row_ror:4 {DPPF}")
    A(f"v_max_f32_dpp v{M_}, v{M_}, v{M_} row_ror:8 {DPPF}")
    rows_reduce("v_max_f32", M_, TM+2)
    A(f"s_mov_b32 s46, {LOG2E:#x}"); A(f"s_mov_b32 s47, {LOG2E:#x}")
    for i in range(4):
        A(f"v_pk_add_f32 {vr(S+2*i,2)}, {vr(S+2*i,2)}, {vr(M_,2)} op_sel_hi:[1,0] neg_lo:[0,1] neg_hi:[0,1]")
    for i in range(4): A(f"v_pk_mul_f32 {vr(S+2*i,2)}, {vr(S+2*i,2)}, {sPK}")
    for i in range(8): A(f"v_exp_f32 v{S+i}, v{S+i}")
    for i in range(4): A(f"v_cvt_pk_bf16_f32 v{P+i}, v{S+2*i}, v{S+2*i+1}")
    A(f"v_pk_add_f32 {vr(S,2)}, {vr(S,2)}, {vr(S+2,2)}")
    A(f"v_pk_add_f32 {vr(S+4,2)}, {vr(S+4,2)}, {vr(S+6,2)}")
    A(f"v_pk_add_f32 {vr(S,2)}, {vr(S,2)}, {vr(S+4,2)}")
    A(f"v_add_f32 v{Lr}, v{S}, v{S+1}")
    A(f"v_add_f32_dpp v{Lr}, v{Lr}, v{Lr} row_ror:4 {DPPF}")
    A(f"v_add_f32_dpp v{Lr}, v{Lr}, v{Lr} row_ror:8 {DPPF}")
    rows_reduce("v_add_f32", Lr, TM+2)
    A(f"s_lshl_b32 {sT0}, {XX}, 12"); A(f"s_lshl_b32 {sT1}, {J_}, 5"); A(f"s_add_u32 {sT0}, {sT0}, {sT1}")
    A(f"s_lshl_b32 {sT1}, {W_}, 3"); A(f"s_add_u32 {sT0}, {sT0}, {sT1}"); A(f"s_add_u32 {sT0}, {sT0}, {ST}")
    A(f"v_lshl_add_u32 v10, v5, 10, {sT0}")
    A(f"s_lshl_b32 {sT1}, {W_}, 2")
    A(f"v_lshl_add_u32 v11, v5, 4, {sT1}")
    A(f"v_min_u32 v{M_}, -2, v{M_}"); A(f"v_min_u32 v{Lr}, -2, v{Lr}")
    A(f"s_cmp_eq_u32 {sMODE}, 0")
    A("s_mov_b64 exec, 0xf")
    if "s" not in skip:
        mstore([f"global_store_dwordx2 v10, {vr(M_,2)}, {sWS}"]); vm.issue("stats", store=True)
    A(f"ds_write_b32 v11, v{M_} offset:{L_M}")
    A("s_mov_b64 exec, -1")
    for _ in range(smload): load("V", nv); nv += 1
    stamp(8)
    for r in range(32): A(f"v_mov_b32 v{AT[0]+r}, 0")
    def build_at(blk):
        for t in range(4):
            for r in range(4):
                n = 4*((t - r) % 4)
                ctl = f"row_ror:{n}" if n else "quad_perm:[0,1,2,3]"
                A(f"v_mov_b32_dpp v{AT[blk&1]+4*t+r}, v{P+blk} {ctl} row_mask:0xf bank_mask:{1<<t:#x}")
    def perm(blk, r, e):
        A(f"v_perm_b32 v{QD+4*e+r}, v{vreg(8*blk+2*r+1)+(e>>1)}, v{vreg(8*blk+2*r)+(e>>1)}, {sSELHI if e&1 else sSELLO}")
    def pvm(blk, e):
        c = "0" if (blk == 0 and (e & 3) == 0) else vr(O+4*(e>>2),4)
        A(f"v_mfma_f32_16x16x32_bf16 {vr(O+4*(e>>2),4)}, {vr(AT[blk&1]+4*(e&3),4)}, {vr(QD+4*e,4)}, {c}")
    def pv(blk):
        for r in range(3):
            vm.wait(("V", 8*blk+2*r+1))
            for e in range(8): perm(blk, r, e)
        vm.wait(("V", 8*blk+7))
        perm(blk, 3, 0); perm(blk, 3, 1); perm(blk, 3, 2)
        for e in range(8):
            pvm(blk, e)
            if e + 3 < 8: perm(blk, 3, e+3)
    build_at(0); build_at(1)
    while nv < pv0: load("V", nv); nv += 1
    pv(0); build_at(2)
    while nv < pv1: load("V", nv); nv += 1
    pv(1); build_at(3)
    while nv < 32: load("V", nv); nv += 1
    A("s_waitcnt lgkmcnt(0)")
    stamp(9)
    A("s_barrier")
    F = TM + 4
    A(f"s_lshl_b32 {sT0}, {W_}, 4")
    A(f"v_mov_b32 v10, {sT0}")
    A(f"ds_read_b128 {vr(F,4)}, v10 offset:{L_M}")
    A(f"s_lshl_b32 {sT0}, {W_}, 11")
    A(f"v_lshl_add_u32 v12, v0, 2, {sT0}")
    A(f"s_lshl_b32 {sT0}, {W_}, 9")
    A(f"v_lshl_add_u32 v13, v0, 3, {sT0}")
    A(f"s_lshl_b32 {sT0}, {XX}, 15"); A(f"s_lshl_b32 {sT1}, {W_}, 13"); A(f"s_add_u32 {sT0}, {sT0}, {sT1}")
    A(f"s_lshl_b32 {sT1}, {J_}, 6"); A(f"s_add_u32 {sT0}, {sT0}, {sT1}"); A(f"s_add_u32 {sT0}, {sT0}, {IN1}")
    A(f"v_lshl_add_u32 v14, v3, 11, {sT0}")
    A("v_lshl_add_u32 v14, v2, 2, v14")
    A("s_waitcnt lgkmcnt(0)")
    A(f"v_max3_f32 v10, v{F}, v{F+1}, v{F+2}")
    A(f"v_max_f32 v10, v10, v{F+3}")
    for i in range(4): A(f"v_sub_f32 v{F+i}, v{F+i}, v10")
    for i in range(4): A(f"v_mul_f32 v{F+i}, {sL2E}, v{F+i}")
    for i in range(4): A(f"v_exp_f32 v{F+i}, v{F+i}")
    pv(2)
    stamp(10)
    pv(3)
    for h in range(4):
        A(f"ds_write2st64_b32 v12, v{O+h}, v{O+4+h} offset0:{L_O//256+2*h} offset1:{L_O//256+2*h+1}")
    A("s_waitcnt lgkmcnt(0)")
    stamp(11)
    A("s_barrier")
    R = QD
    for w in range(4): A(f"ds_read_b64 {vr(R+2*w,2)}, v13 offset:{L_O+2048*w}")
    A(f"s_cmp_eq_u32 {sMODE}, 0")
    A("s_waitcnt lgkmcnt(0)")
    A(f"v_pk_mul_f32 {vr(R,2)}, {vr(R,2)}, {vr(F,2)} op_sel_hi:[1,0]")
    A(f"v_pk_fma_f32 {vr(R,2)}, {vr(R+2,2)}, {vr(F,2)}, {vr(R,2)} op_sel:[0,1,0] op_sel_hi:[1,1,1]")
    A(f"v_pk_fma_f32 {vr(R,2)}, {vr(R+4,2)}, {vr(F+2,2)}, {vr(R,2)} op_sel_hi:[1,0,1]")
    A(f"v_pk_fma_f32 {vr(R,2)}, {vr(R+6,2)}, {vr(F+2,2)}, {vr(R,2)} op_sel:[0,1,0] op_sel_hi:[1,1,1]")
    A(f"v_cvt_pk_bf16_f32 v{R}, v{R}, v{R+1}")
    A(f"v_min_u32 v{R}, -2, v{R}")
    mstore([f"global_store_dword v14, v{R}, {sWS}"])
    stamp(12)
    if diag:
        A(f"s_cmp_eq_u32 {sMODE}, 0"); A("s_cbranch_scc1 L_dm"); stamp(13); A("L_dm:")
    A("s_barrier")
    A("L_fin:")
    if diag:
        stamp(14)
        A("s_waitcnt vmcnt(0)")
        stamp(15)
        A("s_waitcnt lgkmcnt(0)")
        A("s_mov_b64 exec, 1")
        A("v_readfirstlane_b32 s40, v1")
        A("s_lshl_b32 s41, s2, 3"); A("s_add_u32 s40, s40, s41"); A("s_lshl_b32 s40, s40, 8"); A("s_add_u32 s40, s40, 0x10000000")
        A("v_mov_b32 v2, s40")
        for k in range(16):
            A(f"v_mov_b32 v4, s{64+2*k}"); A(f"v_mov_b32 v5, s{65+2*k}")
            A(f"global_store_dwordx2 v2, v[4:5], {sWS} offset:{8*k}")
            A("s_nop 1")
    A("L_end:")
    A("s_endpgm")
    A('.section .rodata,"a"'); A(".p2align 6"); A(f".amdhsa_kernel {KNAME}")
    A("  .amdhsa_next_free_vgpr 256"); A("  .amdhsa_next_free_sgpr 102"); A("  .amdhsa_accum_offset 256")
    A("  .amdhsa_group_segment_fixed_size 0"); A("  .amdhsa_kernarg_size 96"); A("  .amdhsa_user_sgpr_count 2")
    A("  .amdhsa_user_sgpr_kernarg_segment_ptr 1"); A("  .amdhsa_system_sgpr_workgroup_id_x 1")
    A("  .amdhsa_float_denorm_mode_32 3")
    A(".end_amdhsa_kernel")
    lines = []
    for l in L: lines.extend(l.split("\n"))
    lines = hazard_pass(lines)
    return "\n".join(lines) + "\n"

if __name__ == "__main__":
    ap = argparse.ArgumentParser()
    ap.add_argument("out")
    ap.add_argument("--opt", nargs="*", default=[])
    a = ap.parse_args()
    kw = {}
    for o in a.opt:
        k, v = o.split("=")
        try: v = int(v)
        except ValueError: pass
        kw[k] = v
    open(a.out, "w").write(gen(**kw))
```

```python
import sys, argparse
sys.path.insert(0, "gen")
from asmlib import *

KNAME = "parallel_sum__sliding_block_cached__swiglu_ffn__decode_kernel"
QP    = 0x000000
GP    = 0x040000
CLR   = 0x080000
EPOCH = 0x081000
ST    = 0x088000
IN1   = 0x090000
IN2   = 0x100000
L_PA, L_O, L_Q, L_M, L_MODE = 0, 4096, 12288, 13312, 13376
LDS_BYTES = 13440
LOG2E = 0x3fb8aa3b
SCALE = 0x3db504f3
EPS = 0x3727c5ac
SPIN = 1 << 18

HEADER = open("parallel_sum__sliding_block_cached__swiglu_ffn__decode.s.ref").read().split("; Override launch")[0]

def gen(diag=False, nt="nt", ntw="nt", nB0=12, nVf=12, swz="xorj", fast=1, pollsleep=0, prefetch=1, align=1,
        skip="", qkload=2, smload=2, pv0=19, pv1=27, walk=0, probe=-1, pwave=-1, pwg=-1, pmul=4):
    L = []
    A = L.append
    def stamp(k):
        if probe >= 0:
            if k == 0: A("s_memrealtime s[64:65]"); A("s_memrealtime s[66:67]")
            elif k == probe: A("s_memrealtime s[66:67]")
        if diag:
            A(f"s_memrealtime s[{64+2*k}:{65+2*k}]")
            if k == 1:
                for q in range(2, 16): A(f"s_mov_b64 s[{64+2*q}:{65+2*q}], 0")
    uid = [0]
    def lab(p):
        uid[0] += 1
        return f"L_{p}_{uid[0]}"
    DPPF = "row_mask:0xf bank_mask:0xf"
    sX, sK, sV, sWQ, sWO, sG, sU, sWD, sOUT, sDBG, sWS = (f"s[{a}:{a+1}]" for a in (8,10,12,14,16,20,22,24,26,28,30))
    W_, XX, J_, B_, S_ = "s3", "s4", "s5", "s6", "s7"
    sPITCH, sCB, sKH, sFB, sHB = "s32", "s33", "s34", "s35", "s36"
    sSELLO, sSELHI, sHI = "s37", "s38", "s39"
    sT0, sT1, sT2, sT3 = "s40", "s41", "s42", "s43"
    sSPIN = "s44"; sMODE = "s45"
    sPK = "s[46:47]"
    sSAVE = "s[48:49]"
    sTB = "s[50:51]"
    sRB = "s52"; sL2E = "s53"; sTAG = "s56"; sNOA = "s57"

    def unpack(lo, hi, src):
        A(f"v_lshlrev_b32 v{lo}, 16, v{src}")
        A(f"v_and_b32 v{hi}, {sHI}, v{src}")
    def rows_reduce(op, v, t):
        A(f"v_mov_b32 v{t}, v{v}")
        A(f"v_permlane16_swap_b32 v{v}, v{t}")
        A(f"{op} v{v}, v{v}, v{t}")
        A(f"v_mov_b32 v{t}, v{v}")
        A(f"v_permlane32_swap_b32 v{v}, v{t}")
        A(f"{op} v{v}, v{v}, v{t}")
    def max_tree_u32(dst, regs):
        regs = list(regs)
        A(f"v_max3_u32 v{dst}, v{regs[0]}, v{regs[1]}, v{regs[2]}")
        regs = regs[3:]
        while len(regs) >= 2:
            A(f"v_max3_u32 v{dst}, v{dst}, v{regs[0]}, v{regs[1]}"); regs = regs[2:]
        if regs: A(f"v_max_u32 v{dst}, v{dst}, v{regs[0]}")
    def poll(loads, regs, tmp, first_issued=False, tagged=False):
        lp, dn = lab("poll"), lab("pdone")
        def check():
            r = list(regs)
            if tagged:
                if len(r) == 1:
                    A(f"v_cmp_ne_u32 vcc, {sTAG}, v{r[0]}")
                else:
                    A(f"v_xor_b32 v{tmp}, {sTAG}, v{r[0]}")
                    for q in r[1:]: A(f"v_bitop3_b32 v{tmp}, v{q}, {sTAG}, v{tmp} bitop3:0xbe")
                    A(f"v_cmp_ne_u32 vcc, 0, v{tmp}")
            else:
                max_tree_u32(tmp, r)
                A(f"v_cmp_eq_u32 vcc, -1, v{tmp}")
        A(f"s_mov_b32 {sSPIN}, {SPIN}")
        if first_issued:
            chk = lab("pchk"); A(f"s_branch {chk}")
        A(f"{lp}:")
        for l in loads: A(l)
        A("s_waitcnt vmcnt(0)")
        if first_issued: A(f"{chk}:")
        check()
        A(f"s_cbranch_vccz {dn}")
        A("s_mov_b64 exec, vcc")
        if pollsleep: A(f"s_sleep {pollsleep}")
        A(f"s_sub_u32 {sSPIN}, {sSPIN}, 1")
        A(f"s_cbranch_scc0 {lp}")
        A(f"{dn}:")
        A("s_mov_b64 exec, -1")
    def mstore(instrs):
        if not fast:
            for i in instrs: A(i + " sc1")
            return
        sl, dn = lab("slow"), lab("sdone")
        A(f"s_cbranch_scc0 {sl}")
        for i in instrs: A(i)
        A(f"s_branch {dn}")
        A(f"{sl}:")
        for i in instrs: A(i + " sc1")
        A(f"{dn}:")
    def consts():
        A(f"s_mov_b32 {sHI}, 0xffff0000")
        A(f"s_mov_b32 {sSELLO}, 0x05040100"); A(f"s_mov_b32 {sSELHI}, 0x07060302")
        A(f"s_mov_b32 {sL2E}, {LOG2E:#x}")

    A(HEADER.rstrip())
    A(f"; @launch grid=(256,1,1) block=(512,1,1) lds={LDS_BYTES}")
    A('.amdgcn_target "amdgcn-amd-amdhsa--gfx950"')
    A(".text")
    if align:
        A(".p2align 12"); A(f".fill {0xD00//4}, 4, 0xbf810000")
    A(f".globl {KNAME}"); A(".p2align 8"); A(f".type {KNAME},@function"); A(f"{KNAME}:")
    stamp(0)
    A("s_cmp_ge_u32 s2, 256"); A("s_cbranch_scc1 L_end")
    A("s_load_dwordx16 s[8:23], s[0:1], 0")
    A("s_load_dwordx8 s[24:31], s[0:1], 64")
    A("v_lshrrev_b32 v1, 6, v0")
    A("v_and_b32 v0, 63, v0")
    A(f"v_readfirstlane_b32 {W_}, v1")
    A(f"s_and_b32 {XX}, s2, 7")
    A(f"s_lshr_b32 {J_}, s2, 3")
    A("v_and_b32 v2, 15, v0")
    A("v_lshrrev_b32 v3, 4, v0")
    A("v_bfe_u32 v4, v0, 2, 2")
    A("v_and_b32 v5, 3, v0")
    A(f"s_lshr_b32 {B_}, {J_}, 3"); A(f"s_and_b32 {S_}, {J_}, 7")
    A(f"s_cmp_ge_u32 {W_}, 4"); A("s_cbranch_scc1 L_stream")

    vm = VM(A)
    X, XA, T, U, AF, BF, D = 16, 32, 40, 72, 104, 112, 144
    A(f"s_and_b32 {sKH}, {J_}, 1")
    A(f"s_lshr_b32 {sT0}, {J_}, 1")
    A(f"s_lshl_b32 {sT1}, {XX}, 3"); A(f"s_add_u32 {sT1}, {sT1}, {sT0}")
    A(f"s_mul_i32 {sFB}, {XX}, 7"); A(f"s_add_u32 {sFB}, {sFB}, 1"); A(f"s_lshr_b32 {sFB}, {sFB}, 1")
    A(f"s_bfe_u32 {sT2}, {J_}, 0x20002"); A(f"s_add_u32 {sT2}, {sT2}, {sFB}")
    A(f"s_cmp_lt_u32 {J_}, 16")
    A(f"s_cselect_b32 {sCB}, {sT1}, {sT2}")
    A(f"s_movk_i32 {sT3}, 3584")
    A(f"s_cselect_b32 {sPITCH}, 8192, {sT3}")
    A("v_lshl_add_u32 v6, v3, 2, v5")
    A("v_lshlrev_b32 v6, 4, v6")
    A("v_lshl_add_u32 v6, v4, 10, v6")
    A(f"s_lshl_b32 {sT0}, {sKH}, 2"); A(f"s_add_u32 {sT0}, {sT0}, {W_}"); A(f"s_lshl_b32 {sT0}, {sT0}, 6")
    A(f"v_lshl_add_u32 v7, v3, 4, {sT0}")
    A("v_lshlrev_b32 v8, 1, v7")
    A("v_lshl_add_u32 v8, v4, 10, v8")
    A(f"s_lshl_b32 {sT1}, {sCB}, 7")
    A(f"v_lshl_add_u32 v9, v2, 3, {sT1}")
    A(f"v_mad_u32_u24 v9, v7, {sPITCH}, v9")
    A(f"s_getreg_b32 {sHB}, hwreg(HW_REG_XCC_ID, 0, 4)")
    A(f"s_bitset1_b32 {sHB}, 7")
    A(f"s_lshl_b32 {sT2}, {XX}, 5"); A(f"s_add_u32 {sT3}, {sT2}, {J_}")
    A(f"v_mov_b32 v10, {sT3}"); A(f"v_mov_b32 v11, {sHB}")
    A("v_and_b32 v12, 7, v0")
    A(f"v_lshl_add_u32 v12, v12, 2, {sT2}")
    A(f"s_and_b32 {sNOA}, s2, 0xe1")
    A(f"s_bitcmp1_b32 {J_}, 1")
    A("s_waitcnt lgkmcnt(0)")
    A(f"s_cselect_b64 {sTB}, {sU}, {sG}")
    A(f"s_cmp_lt_u32 {J_}, 16")
    A(f"s_cselect_b64 {sTB}, {sWQ}, {sTB}")
    A(f"global_store_byte v10, v11, {sDBG}")
    A(f"s_load_dword {sTAG}, {sWS}, {EPOCH:#x}")
    for i in range(4):
        A(f"global_load_dwordx4 {vr(X+4*i,4)}, v6, {sX} offset:{256*i}"); vm.issue(("x", i))
    A(f"s_cmp_eq_u32 {sNOA}, 0xe1"); A("s_cbranch_scc1 L_noA")
    for i in range(2):
        A(f"global_load_dwordx4 {vr(XA+4*i,4)}, v8, {sX} offset:{16*i}"); vm.issue(("xa", i))
    for jj in range(16):
        A(f"global_load_dwordx2 {vr(T+2*jj,2)}, v9, {sTB} {ntw}"); vm.issue(("t", jj))
        if jj < 15: A(f"v_add_u32 v9, {sPITCH}, v9")
    stamp(1)
    consts()
    vm.wait(("x", 3))
    A(f"global_load_dword v14, v12, {sDBG} sc1"); vm.issue("mode")
    stamp(2)
    for i in range(16): unpack(U+2*i, U+2*i+1, X+i)
    for c in range(4):
        A(f"v_pk_add_f32 {vr(X+2*c,2)}, {vr(U+8*c,2)}, {vr(U+8*c+2,2)}")
    for k in (4, 6):
        for c in range(4):
            A(f"v_pk_add_f32 {vr(X+2*c,2)}, {vr(X+2*c,2)}, {vr(U+8*c+k,2)}")
    def fold4(dst):
        A(f"v_pk_add_f32 {vr(X,2)}, {vr(X,2)}, {vr(X+2,2)}")
        A(f"v_pk_add_f32 {vr(X+4,2)}, {vr(X+4,2)}, {vr(X+6,2)}")
        A(f"v_pk_add_f32 {vr(X,2)}, {vr(X,2)}, {vr(X+4,2)}")
        A(f"v_add_f32 v{dst}, v{X}, v{X+1}")
        A(f"v_add_f32_dpp v{dst}, v{dst}, v{dst} quad_perm:[1,0,3,2] {DPPF}")
        A(f"v_add_f32_dpp v{dst}, v{dst}, v{dst} quad_perm:[2,3,0,1] {DPPF}")
        rows_reduce("v_add_f32", dst, X+8)
        A(f"v_mul_f32 v{dst}, 0x3b000000, v{dst}")
    fold4(10)
    for i in range(16):
        A(f"v_pk_add_f32 {vr(U+2*i,2)}, {vr(U+2*i,2)}, v[10:11] op_sel_hi:[1,0] neg_lo:[0,1] neg_hi:[0,1]")
    for c in range(4):
        A(f"v_pk_mul_f32 {vr(X+2*c,2)}, {vr(U+8*c,2)}, {vr(U+8*c,2)}")
    for k in (2, 4, 6):
        for c in range(4):
            A(f"v_pk_fma_f32 {vr(X+2*c,2)}, {vr(U+8*c+k,2)}, {vr(U+8*c+k,2)}, {vr(X+2*c,2)}")
    fold4(11)
    A("v_cvt_pk_bf16_f32 v12, v10, v11")
    unpack(10, 11, 12)
    A(f"v_add_f32 v11, {EPS:#x}, v11")
    A("v_cvt_pk_bf16_f32 v11, v11, v11")
    A("v_lshlrev_b32 v11, 16, v11")
    A("v_sqrt_f32 v11, v11")
    A("v_cvt_pk_bf16_f32 v11, v11, v11")
    A("v_lshlrev_b32 v11, 16, v11")
    A("v_rcp_f32 v12, v11")
    vm.wait(("xa", 1))
    for i in range(8): unpack(U+2*i, U+2*i+1, XA+i)
    for i in range(8):
        A(f"v_pk_add_f32 {vr(U+2*i,2)}, {vr(U+2*i,2)}, v[10:11] op_sel_hi:[1,0] neg_lo:[0,1] neg_hi:[0,1]")
    for i in range(8): A(f"v_cvt_pk_bf16_f32 v{XA+i}, v{U+2*i}, v{U+2*i+1}")
    for i in range(8): unpack(U+2*i, U+2*i+1, XA+i)
    for i in range(8):
        A(f"v_pk_mul_f32 {vr(U+2*i,2)}, {vr(U+2*i,2)}, v[12:13] op_sel_hi:[1,0]")
    for i in range(8): A(f"v_cvt_pk_bf16_f32 v{AF+i}, v{U+2*i}, v{U+2*i+1}")
    stamp(3)
    for blk in range(2):
        vm.wait(("t", 8*blk+7))
        for e in range(4):
            for r in range(4):
                A(f"v_perm_b32 v{BF+16*blk+4*e+r}, v{T+2*(8*blk+2*r+1)+(e>>1)}, v{T+2*(8*blk+2*r)+(e>>1)}, {sSELHI if e&1 else sSELLO}")
        for e in range(4):
            c = "0" if blk == 0 else vr(D+4*e,4)
            A(f"v_mfma_f32_16x16x32_bf16 {vr(D+4*e,4)}, {vr(AF+4*blk,4)}, {vr(BF+16*blk+4*e,4)}, {c}")
    A(f"s_lshl_b32 {sT0}, {W_}, 10")
    A(f"v_lshl_add_u32 v10, v0, 4, {sT0}")
    A(f"ds_write2_b32 v10, v{D}, v{D+4} offset0:0 offset1:1")
    A(f"ds_write2_b32 v10, v{D+8}, v{D+12} offset0:2 offset1:3")
    A("s_branch L_B0s")
    A("L_noA:")
    stamp(1)
    consts()
    A("s_waitcnt vmcnt(0)")
    A(f"global_load_dword v14, v12, {sDBG} sc1")
    A("L_B0s:")
    A("s_waitcnt lgkmcnt(0)")
    stamp(4)
    A("s_barrier")
    stamp(5)
    A(f"s_mul_i32 {sTAG}, {sTAG}, 0x0019660d"); A(f"s_add_u32 {sTAG}, {sTAG}, 0x3c6ef35f")
    A(f"s_mul_i32 {sT0}, {sHB}, 0x01010101")
    A(f"s_cmp_eq_u32 {W_}, 1"); A("s_cbranch_scc1 L_w1a")
    A(f"s_cmp_eq_u32 {W_}, 2"); A("s_cbranch_scc1 L_B1s")
    A("s_waitcnt vmcnt(0)")
    A(f"v_cmp_ne_u32 vcc, {sT0}, v14")
    A(f"s_mov_b32 {sMODE}, vcc_lo")
    A(f"s_cmp_eq_u32 {W_}, 3"); A("s_cbranch_scc1 L_clear")
    A(f"s_cmp_eq_u32 {sNOA}, 0xe1"); A("s_cbranch_scc1 L_qduty")
    A("v_lshlrev_b32 v10, 4, v0")
    for w in range(4): A(f"ds_read_b128 {vr(X+4*w,4)}, v10 offset:{L_PA+1024*w}")
    A(f"s_lshl_b32 {sT0}, {XX}, 15"); A(f"s_lshl_b32 {sT1}, {sKH}, 12"); A(f"s_add_u32 {sT1}, {sT0}, {sT1}")
    A(f"s_and_b32 {sT2}, {sCB}, 7"); A(f"s_lshl_b32 {sT2}, {sT2}, 9"); A(f"s_add_u32 {sT1}, {sT1}, {sT2}")
    A(f"v_lshl_add_u32 v11, v2, 4, {sT1}")
    A("v_lshl_add_u32 v11, v3, 13, v11")
    A("v_add_u32 v12, 256, v11")
    A(f"s_cmp_lt_u32 {J_}, 16"); A("s_cbranch_scc1 L_pubq")
    A(f"s_bfe_u32 {sT1}, {J_}, 0x20002"); A(f"s_lshl_b32 {sT1}, {sT1}, 13"); A(f"s_add_u32 {sT0}, {sT0}, {sT1}")
    A(f"s_and_b32 {sT1}, {J_}, 3"); A(f"s_lshl_b32 {sT1}, {sT1}, 8"); A(f"s_add_u32 {sT0}, {sT0}, {sT1}"); A(f"s_add_u32 {sT0}, {sT0}, {GP}")
    A(f"v_lshl_add_u32 v11, v4, 11, {sT0}")
    A("v_lshl_add_u32 v11, v3, 6, v11")
    A("v_lshl_add_u32 v11, v5, 4, v11")
    A("v_add_u32 v12, 1024, v11")
    A("L_pubq:")
    for i in range(4): A(f"v_mov_b32 v{XA+2*i+1}, {sTAG}")
    A(f"s_cmp_eq_u32 {sMODE}, 0")
    A("s_waitcnt lgkmcnt(0)")
    for h in range(2):
        A(f"v_pk_add_f32 {vr(X+2*h,2)}, {vr(X+2*h,2)}, {vr(X+4+2*h,2)}")
        A(f"v_pk_add_f32 {vr(X+8+2*h,2)}, {vr(X+8+2*h,2)}, {vr(X+12+2*h,2)}")
    for i in range(4): A(f"v_add_f32 v{XA+2*i}, v{X+i}, v{X+8+i}")
    if "p" not in skip:
        mstore([f"global_store_dwordx4 v11, {vr(XA,4)}, {sWS}", f"global_store_dwordx4 v12, {vr(XA+4,4)}, {sWS}"])
    A("s_waitcnt vmcnt(0)")
    A("L_qduty:")
    stamp(6)
    A(f"s_lshl_b32 {sT0}, {XX}, 2"); A(f"s_add_u32 {sT0}, {sT0}, {B_}"); A(f"s_lshl_b32 {sT0}, {sT0}, 13"); A(f"s_add_u32 {sT0}, {sT0}, {QP+4096}")
    A(f"v_lshl_add_u32 v10, v0, 4, {sT0}")
    if "q" not in skip:
        poll([f"global_load_dwordx4 {vr(U+4*i,4)}, v10, {sWS} offset:{1024*i-4096} sc1" for i in range(8)], range(U+1, U+32, 2), 11, tagged=True)
    for i in range(8): A(f"v_add_f32 v{U+2*i}, v{U+2*i}, v{U+16+2*i}")
    for h in range(4): A(f"v_cvt_pk_bf16_f32 v{X+h}, v{U+4*h}, v{U+4*h+2}")
    A("v_and_b32 v10, 32, v0"); A("v_and_b32 v11, 1, v3")
    A("v_add_u32 v10, v10, v11")
    A("v_lshl_add_u32 v10, v2, 1, v10")
    A("v_lshlrev_b32 v10, 2, v10")
    A(f"ds_write2st64_b32 v10, v{X}, v{X+1} offset0:{L_Q//256} offset1:{L_Q//256+1}")
    A(f"ds_write2st64_b32 v10, v{X+2}, v{X+3} offset0:{L_Q//256+2} offset1:{L_Q//256+3}")
    A("s_branch L_B1s")
    A("L_w1a:")
    if prefetch:
        A(f"s_cmp_lg_u32 {J_}, 31"); A("s_cbranch_scc1 L_B1s")
        A(f"s_getpc_b64 {sSAVE}")
        A("L_pc:")
        A("v_lshlrev_b32 v10, 7, v0")
        A("v_add_u32 v11, 0x2000, v10")
        A("v_min_u32 v10, L_end-L_pc, v10")
        A("v_min_u32 v11, L_end-L_pc, v11")
        A(f"global_load_dword v250, v10, {sSAVE}")
        A(f"global_load_dword v251, v11, {sSAVE}")
    A("s_branch L_B1s")
    A("L_clear:")
    A(f"v_mov_b32 v13, {sMODE}"); A(f"v_mov_b32 v15, {L_MODE}")
    A("ds_write_b32 v15, v13")
    for i in range(4): A(f"v_mov_b32 v{X+i}, -1")
    A(f"s_lshl_b32 {sT0}, {XX}, 15"); A(f"s_lshl_b32 {sT1}, {J_}, 6"); A(f"s_add_u32 {sT0}, {sT0}, {sT1}"); A(f"s_add_u32 {sT0}, {sT0}, {IN1}")
    A("v_lshrrev_b32 v10, 2, v0")
    A(f"v_lshl_add_u32 v10, v10, 11, {sT0}")
    A("v_lshl_add_u32 v10, v5, 4, v10")
    A(f"s_lshl_b32 {sT0}, {XX}, 12"); A(f"s_lshl_b32 {sT1}, {J_}, 5"); A(f"s_add_u32 {sT0}, {sT0}, {sT1}"); A(f"s_add_u32 {sT0}, {sT0}, {ST}")
    A("v_bfe_u32 v11, v0, 3, 2"); A("v_and_b32 v12, 7, v0")
    A(f"v_lshl_add_u32 v11, v11, 10, {sT0}")
    A("v_lshl_add_u32 v11, v12, 2, v11")
    A(f"s_lshl_b32 {sT1}, {XX}, 5"); A(f"s_add_u32 {sT1}, {sT1}, {J_}"); A(f"s_lshl_b32 {sT1}, {sT1}, 2"); A(f"s_add_u32 {sT1}, {sT1}, {CLR}")
    A(f"v_mov_b32 v12, {sT1}"); A(f"v_mov_b32 v13, {sTAG}")
    A(f"s_cmp_eq_u32 {sMODE}, 0")
    if "c" not in skip:
        mstore([f"global_store_dwordx4 v10, {vr(X,4)}, {sWS}", f"global_store_dword v11, v{X}, {sWS}"])
    A("s_waitcnt vmcnt(0)")
    A("s_mov_b64 exec, 1")
    mstore([f"global_store_dword v12, v13, {sWS}"])
    A("s_mov_b64 exec, -1")
    A("L_B1s:")
    A("s_waitcnt lgkmcnt(0)")
    stamp(7)
    A("s_barrier")
    AD, AO, AS, AH1, AH2, AOUT, AIN2, ALW, XV = 160, 161, 162, 163, 164, 165, 166, 167, 168
    STT, WD, WO, HF, WT, BD, BO, DH, OA, DO = 24, 28, 36, 52, 56, 64, 72, 88, 104, 112
    Y = 144
    A(f"s_lshl_b32 {sRB}, {XX}, 2"); A(f"s_add_u32 {sRB}, {sRB}, {B_}")
    A(f"s_lshl_b32 {sT3}, {sRB}, 2"); A(f"s_add_u32 {sT3}, {sT3}, {W_}"); A(f"s_lshl_b32 {sT3}, {sT3}, 11")
    A(f"s_lshl_b32 {sT0}, {XX}, 7"); A(f"s_add_u32 {sT0}, {sT0}, {CLR}")
    A("v_and_b32 v13, 31, v0")
    A(f"v_lshl_add_u32 v13, v13, 2, {sT0}")
    cl = [f"global_load_dword v{Y+8}, v13, {sWS} sc1"]
    A(f"s_add_u32 {sT0}, {sT3}, {GP}")
    A(f"v_lshl_add_u32 v10, v5, 8, {sT0}")
    A("v_lshl_add_u32 v10, v4, 6, v10")
    A("v_lshl_add_u32 v10, v3, 4, v10")
    hl = [f"global_load_dwordx4 {vr(Y+4*i,4)}, v10, {sWS} offset:{1024*i} sc1" for i in range(2)]
    A(f"v_mov_b32 v{HF}, 0"); A(f"v_mov_b32 v{HF+1}, 0")
    A(f"s_and_b32 {sNOA}, s2, 0xc1")
    A(f"s_cmp_eq_u32 {sNOA}, 0xc1"); A("s_cbranch_scc1 L_noh")
    if "h" not in skip:
        poll(cl + hl, [Y+8, Y+1, Y+3, Y+5, Y+7], 11, tagged=True)
    for i in range(4): A(f"v_add_f32_dpp v{X+i}, v{Y+2*i}, v{Y+2*i} quad_perm:[1,0,3,2] {DPPF}")
    for i in range(2): A(f"v_cvt_pk_bf16_f32 v{X+4+i}, v{X+2*i}, v{X+2*i+1}")
    for i in range(2): unpack(X+2*i, X+2*i+1, X+4+i)
    for i in range(4): A(f"v_mul_f32 v{X+4+i}, {sL2E}, v{X+i}")
    for i in range(4): A(f"v_exp_f32 v{X+4+i}, -v{X+4+i}")
    for i in range(4): A(f"v_add_f32 v{X+4+i}, 1.0, v{X+4+i}")
    for i in range(4): A(f"v_rcp_f32 v{X+4+i}, v{X+4+i}")
    for i in range(4): A(f"v_mul_f32 v{X+4+i}, v{X+i}, v{X+4+i}")
    for i in range(2): A(f"v_cvt_pk_bf16_f32 v{Y+i}, v{X+4+2*i}, v{X+5+2*i}")
    for i in range(2): unpack(X+4+2*i, X+5+2*i, Y+i)
    for i in range(4): A(f"v_mul_f32_dpp v{X+4+i}, v{X+i}, v{X+4+i} quad_perm:[2,3,0,1] {DPPF}")
    A("v_cmp_eq_u32 vcc, 0, v5")
    for i in range(2): A(f"v_cvt_pk_bf16_f32 v{HF+i}, v{X+4+2*i}, v{X+5+2*i}")
    for i in range(2): A(f"v_cndmask_b32 v{HF+i}, 0, v{HF+i}, vcc")
    A("s_branch L_hdone")
    A("L_noh:")
    if "h" not in skip:
        poll(cl, [Y+8], 11, tagged=True)
    A("L_hdone:")
    A(f"s_lshl_b32 {sT1}, {S_}, 7")
    A(f"v_lshl_add_u32 v10, v2, 3, {sT1}")
    A(f"s_add_u32 {sT2}, {sFB}, {B_}"); A(f"s_lshl_b32 {sT2}, {sT2}, 2"); A(f"s_add_u32 {sT2}, {sT2}, {W_}"); A(f"s_lshl_b32 {sT2}, {sT2}, 14")
    A(f"v_lshl_add_u32 v11, v3, 12, {sT2}")
    A(f"v_add_u32 v{AD}, v11, v10")
    A(f"s_lshl_b32 {sT2}, {sRB}, 7")
    A(f"s_lshl_b32 {sT0}, {W_}, 1"); A(f"s_add_u32 {sT2}, {sT2}, {sT0}")
    A("v_and_b32 v11, 1, v3"); A("v_lshrrev_b32 v12, 1, v3")
    A("v_lshl_add_u32 v11, v11, 6, v12")
    A(f"v_add_u32 v11, {sT2}, v11")
    A(f"v_lshl_add_u32 v{AO}, v11, 10, v10")
    A(f"s_lshl_b32 {sT2}, {sRB}, 10"); A(f"s_add_u32 {sT2}, {sT2}, {ST}")
    A(f"v_lshl_add_u32 v{AS}, v0, 4, {sT2}")
    A(f"s_add_u32 {sT2}, {sT3}, {IN1}")
    A(f"v_lshl_add_u32 v11, v4, 9, {sT2}")
    A("v_lshl_add_u32 v11, v5, 6, v11")
    A(f"v_lshl_add_u32 v{AH1}, v3, 4, v11")
    A(f"s_lshl_b32 {sT2}, {S_}, 14"); A(f"s_lshr_b32 {sT0}, {W_}, 1"); A(f"s_lshl_b32 {sT1}, {sT0}, 11"); A(f"s_add_u32 {sT2}, {sT2}, {sT1}")
    A(f"s_lshl_b32 {sT1}, {sRB}, 6"); A(f"s_add_u32 {sT2}, {sT2}, {sT1}"); A(f"s_add_u32 {sT2}, {sT2}, {IN2}")
    A(f"v_lshl_add_u32 v11, v4, 12, {sT2}")
    A("v_lshl_add_u32 v11, v5, 4, v11")
    A(f"v_lshl_add_u32 v{AH2}, v3, 17, v11")
    A(f"s_lshl_b32 {sT1}, {W_}, 10")
    A(f"v_lshl_add_u32 v{ALW}, v0, 4, {sT1}")
    A(f"s_lshl_b32 {sT0}, {sT0}, 3")
    A(f"v_lshl_add_u32 v{XV+1}, v0, 4, {sT0}")
    A(f"s_lshr_b32 {sT0}, s2, 1"); A(f"s_lshl_b32 {sT0}, {sT0}, 4"); A(f"s_and_b32 {sT1}, s2, 1"); A(f"s_lshl_b32 {sT1}, {sT1}, 1"); A(f"s_add_u32 {sT0}, {sT0}, {sT1}")
    A("v_lshrrev_b32 v11, 5, v0")
    A("v_lshl_add_u32 v11, v5, 2, v11")
    A(f"v_add_lshl_u32 v{AOUT}, v11, {sT0}, 1")
    A(f"s_lshl_b32 {sT0}, s2, 11"); A(f"s_add_u32 {sT0}, {sT0}, {IN2}")
    A(f"v_lshl_add_u32 v{AIN2}, v0, 4, {sT0}")
    A(f"s_cmp_lg_u32 {W_}, 1"); A("s_cbranch_scc1 L_nox")
    A(f"global_load_ushort v{XV}, v{AOUT}, {sX}")
    A("L_nox:")
    for r in range(8): A(f"v_mov_b32 v{WD+r}, 0")
    A(f"s_movk_i32 {sT0}, 0x2000")
    A(f"s_cmp_eq_u32 {sNOA}, 0xc1")
    stamp(8)
    A("s_barrier")
    vm = VM(A)
    stl = f"global_load_dwordx4 {vr(STT,4)}, v{AS}, {sWS} sc1"
    h1l = [f"global_load_dwordx4 {vr(OA+4*sh,4)}, v{AH1}, {sWS} offset:{256*sh} sc1" for sh in range(2)]
    A(stl); vm.issue("st")
    A("s_cbranch_scc1 L_nowd")
    for jj in range(4):
        A(f"global_load_dwordx2 {vr(WD+2*jj,2)}, v{AD}, {sWD} offset:{1024*jj} {ntw}")
    A("L_nowd:")
    for jj in range(8):
        A(f"global_load_dwordx2 {vr(WO+2*jj,2)}, v{AO}, {sWO} {ntw}"); vm.issue(("wo", jj))
        if jj < 7: A(f"v_add_u32 v{AO}, {sT0}, v{AO}")
    stamp(9)
    A("s_barrier")
    vm.wait("st")
    poll([stl], range(STT, STT+4), 11, first_issued=True)
    m0, l0, m1, l1 = STT, STT+1, STT+2, STT+3
    A(f"v_max_f32 v10, v{m0}, v{m1}")
    def wdperm(e):
        for r in range(2):
            A(f"v_perm_b32 v{BD+2*e+r}, v{WD+2*(2*r+1)+(e>>1)}, v{WD+2*(2*r)+(e>>1)}, {sSELHI if e&1 else sSELLO}")
    wdperm(0)
    A(f"v_max_f32_dpp v10, v10, v10 quad_perm:[1,0,3,2] {DPPF}")
    wdperm(1)
    A(f"v_max_f32_dpp v11, v10, v10 quad_perm:[2,3,0,1] {DPPF}")
    wdperm(2)
    A(f"v_max_f32_dpp v11, v11, v11 row_ror:4 {DPPF}")
    wdperm(3)
    A(f"v_max_f32_dpp v11, v11, v11 row_ror:8 {DPPF}")
    A(f"v_sub_f32 v{m0}, v{m0}, v11"); A(f"v_sub_f32 v{m1}, v{m1}, v11"); A("v_sub_f32 v10, v10, v11")
    A(f"v_mul_f32 v{m0}, {sL2E}, v{m0}"); A(f"v_mul_f32 v{m1}, {sL2E}, v{m1}"); A(f"v_mul_f32 v10, {sL2E}, v10")
    A(f"v_exp_f32 v{m0}, v{m0}"); A(f"v_exp_f32 v{m1}, v{m1}"); A("v_exp_f32 v10, v10")
    A(f"v_mul_f32 v12, v{m0}, v{l0}")
    A(f"v_fmac_f32 v12, v{m1}, v{l1}")
    def dhm(e): A(f"v_mfma_f32_16x16x16_bf16 {vr(DH+4*e,4)}, {vr(HF,2)}, {vr(BD+2*e,2)}, 0")
    dhm(0)
    A(f"v_add_f32_dpp v12, v12, v12 quad_perm:[1,0,3,2] {DPPF}")
    dhm(1)
    A(f"v_add_f32_dpp v12, v12, v12 quad_perm:[2,3,0,1] {DPPF}")
    dhm(2)
    A(f"v_add_f32_dpp v12, v12, v12 row_ror:4 {DPPF}")
    dhm(3)
    A(f"v_add_f32_dpp v12, v12, v12 row_ror:8 {DPPF}")
    A("v_rcp_f32 v12, v12")
    A("v_mul_f32 v10, v10, v12")
    for s in range(8): A(f"v_mov_b32_dpp v{WT+s}, v10 row_newbcast:{2*s} {DPPF}")
    stamp(10)
    vm.wait(("wo", 7))
    for l in h1l: A(l)
    for e in range(4):
        for r in range(4):
            A(f"v_perm_b32 v{BO+4*e+r}, v{WO+2*(2*r+1)+(e>>1)}, v{WO+2*(2*r)+(e>>1)}, {sSELHI if e&1 else sSELLO}")
    stamp(11)
    vm.wait_all()
    poll(h1l, range(OA, OA+8), 11, first_issued=True)
    stamp(12)
    for sh in range(2):
        for e in range(4):
            A(f"v_mfma_f32_16x16x32_bf16 {vr(DO+16*sh+4*e,4)}, {vr(OA+4*sh,4)}, {vr(BO+4*e,4)}, 0")
    for sh in range(2):
        for hh in range(2):
            for e in range(4):
                A(f"v_pk_fma_f32 {vr(DH+4*e,2)}, {vr(DO+16*sh+4*e+2*hh,2)}, {vr(WT+4*sh+2*hh,2)}, {vr(DH+4*e,2)}")
    for e in range(4): A(f"v_add_f32 v{STT+e}, v{DH+4*e}, v{DH+4*e+1}")
    A(f"ds_write_b128 v{ALW}, {vr(STT,4)} offset:{L_PA}")
    A(f"s_bitcmp1_b32 {W_}, 0")
    A("s_waitcnt lgkmcnt(0)")
    A("s_barrier")
    A("s_cbranch_scc1 L_odd")
    for w in range(4): A(f"ds_read_b64 {vr(DO+2*w,2)}, v{XV+1} offset:{L_PA+1024*w}")
    A(f"v_mov_b32 v{STT+1}, {sTAG}"); A(f"v_mov_b32 v{STT+3}, {sTAG}")
    A("s_waitcnt lgkmcnt(0)")
    A(f"v_pk_add_f32 {vr(DO,2)}, {vr(DO,2)}, {vr(DO+2,2)}")
    A(f"v_pk_add_f32 {vr(DO+4,2)}, {vr(DO+4,2)}, {vr(DO+6,2)}")
    A(f"v_add_f32 v{STT}, v{DO}, v{DO+4}")
    A(f"v_add_f32 v{STT+2}, v{DO+1}, v{DO+5}")
    A(f"global_store_dwordx4 v{AH2}, {vr(STT,4)}, {sWS} sc1")
    stamp(13)
    A("s_branch L_fin")
    A("L_odd:")
    A(f"s_cmp_lg_u32 {W_}, 1"); A("s_cbranch_scc1 L_fin")
    G = 16
    poll([f"global_load_dwordx4 {vr(G+4*i,4)}, v{AIN2}, {sWS} offset:{1024*i} sc1" for i in range(2)], [G+1, G+3, G+5, G+7], 13, tagged=True)
    stamp(13)
    A(f"v_add_f32 v{G}, v{G}, v{G+4}")
    A(f"v_add_f32 v{G+2}, v{G+2}, v{G+6}")
    A(f"v_lshlrev_b32 v{XV}, 16, v{XV}")
    A(f"v_permlane32_swap_b32 v{G}, v{G+2}")
    A(f"v_add_f32 v{G}, v{G}, v{G+2}")
    A(f"v_add_f32_dpp v{G}, v{G}, v{G} row_ror:8 {DPPF}")
    A(f"v_add_f32_dpp v{G}, v{G}, v{G} row_ror:4 {DPPF}")
    A(f"v_mov_b32 v{G+1}, v{G}")
    A(f"v_permlane16_swap_b32 v{G}, v{G+1}")
    A(f"v_add_f32 v{G}, v{G}, v{G+1}")
    A(f"v_add_f32 v{G}, v{G}, v{XV}")
    A(f"v_cvt_pk_bf16_f32 v{G}, v{G}, v{G}")
    A("s_mov_b32 exec_lo, 0xf"); A("s_mov_b32 exec_hi, 0xf")
    A(f"global_store_short v{AOUT}, v{G}, {sOUT}")
    A("s_cmp_lg_u32 s2, 0"); A("s_cbranch_scc1 L_fin")
    A("s_mov_b64 exec, 1")
    A(f"v_mov_b32 v10, {EPOCH}"); A(f"v_mov_b32 v11, {sTAG}")
    A(f"global_store_dword v10, v11, {sWS}")
    A("s_branch L_fin")

    A("L_stream:")
    vm = VM(A)
    KR, VF, S, Q, QD, O, P, TM = 16, 144, 192, 200, 204, 236, 244, 248
    def kreg(i): return KR + 4*i
    def vreg(i): return VF + 4*i if i < nVf else KR + 4*(i - nVf)
    AT = [KR + 4*(32 - nVf), KR + 4*(32 - nVf) + 16]
    assert nVf >= 8 and nVf <= 12
    A(f"s_sub_u32 {W_}, {W_}, 4")
    A(f"s_lshl_b32 {sT0}, {B_}, 3"); A(f"s_add_u32 {sT0}, {sT0}, {XX}"); A(f"s_lshl_b32 {sT0}, {sT0}, 22")
    A(f"s_lshl_b32 {sT1}, {S_}, 17"); A(f"s_add_u32 {sT0}, {sT0}, {sT1}"); A(f"s_add_u32 {sT0}, {sT0}, {12288*256}")
    A(f"s_lshl_b32 {sT1}, {W_}, 10")
    if swz == "xorj":
        A(f"s_lshl_b32 {sT2}, {J_}, 12"); A(f"s_add_u32 {sT1}, {sT1}, {sT2}")
    elif swz == "xor7":
        A(f"s_add_u32 {sT2}, {J_}, {XX}"); A(f"s_and_b32 {sT2}, {sT2}, 7"); A(f"s_lshl_b32 {sT2}, {sT2}, 12"); A(f"s_add_u32 {sT1}, {sT1}, {sT2}")
    A(f"v_lshl_add_u32 v6, v0, 4, {sT1}")
    A(f"v_lshl_add_u32 v7, v5, 4, {sT1}")
    A("v_lshl_add_u32 v7, v4, 8, v7")
    A("v_lshl_add_u32 v7, v3, 6, v7")
    A("s_waitcnt lgkmcnt(0)")
    A(f"s_add_u32 s10, s10, {sT0}"); A("s_addc_u32 s11, s11, 0")
    A(f"s_add_u32 s12, s12, {sT0}"); A("s_addc_u32 s13, s13, 0")
    stamp(1)
    nld = [0]
    def load(which, i):
        t = 8 + (nld[0] & 1); nld[0] += 1
        src, base, r = (7, sK, kreg(i)) if which == "K" else (6, sV, vreg(i))
        if i == 0: t = src
        else: A(f"v_xor_b32 v{t}, {4096*i:#x}, v{src}")
        A(f"global_load_dwordx4 {vr(r,4)}, v{t}, {base} {nt}"); vm.issue((which, i))
    for i in range(nB0): load("K", i)
    stamp(4)
    A("s_barrier")
    stamp(5)
    for i in range(nB0, 32): load("K", i)
    for i in range(nVf): load("V", i)
    consts()
    A("v_lshlrev_b32 v10, 8, v5")
    A("v_lshl_add_u32 v10, v3, 6, v10")
    A("v_lshl_add_u32 v10, v4, 4, v10")
    A(f"v_mov_b32 v11, {L_MODE}")
    stamp(6)
    A("s_barrier")
    stamp(7)
    A(f"ds_read_b128 {vr(Q,4)}, v10 offset:{L_Q}")
    A("ds_read_b32 v11, v11")
    A("s_waitcnt lgkmcnt(0)")
    A(f"v_readfirstlane_b32 {sMODE}, v11")
    def extract(i):
        d = QD + 4*(i % 8); s = S + (i & 1) + 2*(i >> 3); t = (i >> 1) & 3
        ops = []; first = True
        for v in range(4):
            if v == t: continue
            n = 4*((t - v) % 4)
            src1 = d + t if first else s
            ops.append(f"v_add_f32_dpp v{s}, v{d+v}, v{src1} row_ror:{n} row_mask:0xf bank_mask:{1<<t:#x}")
            first = False
        return ops
    def qk(i):
        vm.wait(("K", i))
        A(f"v_mfma_f32_16x16x32_bf16 {vr(QD+4*(i%8),4)}, {vr(kreg(i),4)}, {vr(Q,4)}, 0")
    for i in range(4): qk(i)
    for i in range(0, 32, 2):
        a, b = extract(i), extract(i+1)
        A(a[0]); A(b[0])
        if i + 4 < 32: qk(i+4)
        A(a[1]); A(b[1])
        if i + 5 < 32: qk(i+5)
        A(a[2]); A(b[2])
    nv = nVf
    stamp(2)
    for _ in range(qkload): load("V", nv); nv += 1
    stamp(3)
    A(f"s_mov_b32 s46, {SCALE:#x}"); A(f"s_mov_b32 s47, {SCALE:#x}")
    for i in range(4): A(f"v_cvt_pk_bf16_f32 v{P+i}, v{S+2*i}, v{S+2*i+1}")
    for i in range(4): unpack(S+2*i, S+2*i+1, P+i)
    for i in range(4): A(f"v_pk_mul_f32 {vr(S+2*i,2)}, {vr(S+2*i,2)}, {sPK}")
    for i in range(4): A(f"v_cvt_pk_bf16_f32 v{P+i}, v{S+2*i}, v{S+2*i+1}")
    for i in range(4): unpack(S+2*i, S+2*i+1, P+i)
    M_, Lr = TM, TM+1
    A(f"v_max3_f32 v{M_}, v{S}, v{S+1}, v{S+2}")
    A(f"v_max3_f32 v{TM+2}, v{S+3}, v{S+4}, v{S+5}")
    A(f"v_max3_f32 v{M_}, v{M_}, v{S+6}, v{S+7}")
    A(f"v_max_f32 v{M_}, v{M_}, v{TM+2}")
    A(f"v_max_f32_dpp v{M_}, v{M_}, v{M_} row_ror:4 {DPPF}")
    A(f"v_max_f32_dpp v{M_}, v{M_}, v{M_} row_ror:8 {DPPF}")
    rows_reduce("v_max_f32", M_, TM+2)
    A(f"s_mov_b32 s46, {LOG2E:#x}"); A(f"s_mov_b32 s47, {LOG2E:#x}")
    for i in range(4):
        A(f"v_pk_add_f32 {vr(S+2*i,2)}, {vr(S+2*i,2)}, {vr(M_,2)} op_sel_hi:[1,0] neg_lo:[0,1] neg_hi:[0,1]")
    for i in range(4): A(f"v_pk_mul_f32 {vr(S+2*i,2)}, {vr(S+2*i,2)}, {sPK}")
    for i in range(8): A(f"v_exp_f32 v{S+i}, v{S+i}")
    for i in range(4): A(f"v_cvt_pk_bf16_f32 v{P+i}, v{S+2*i}, v{S+2*i+1}")
    A(f"v_pk_add_f32 {vr(S,2)}, {vr(S,2)}, {vr(S+2,2)}")
    A(f"v_pk_add_f32 {vr(S+4,2)}, {vr(S+4,2)}, {vr(S+6,2)}")
    A(f"v_pk_add_f32 {vr(S,2)}, {vr(S,2)}, {vr(S+4,2)}")
    A(f"v_add_f32 v{Lr}, v{S}, v{S+1}")
    A(f"v_add_f32_dpp v{Lr}, v{Lr}, v{Lr} row_ror:4 {DPPF}")
    A(f"v_add_f32_dpp v{Lr}, v{Lr}, v{Lr} row_ror:8 {DPPF}")
    rows_reduce("v_add_f32", Lr, TM+2)
    A(f"s_lshl_b32 {sT0}, {XX}, 12"); A(f"s_lshl_b32 {sT1}, {J_}, 5"); A(f"s_add_u32 {sT0}, {sT0}, {sT1}")
    A(f"s_lshl_b32 {sT1}, {W_}, 3"); A(f"s_add_u32 {sT0}, {sT0}, {sT1}"); A(f"s_add_u32 {sT0}, {sT0}, {ST}")
    A(f"v_lshl_add_u32 v10, v5, 10, {sT0}")
    A(f"s_lshl_b32 {sT1}, {W_}, 2")
    A(f"v_lshl_add_u32 v11, v5, 4, {sT1}")
    A(f"v_min_u32 v{M_}, -2, v{M_}"); A(f"v_min_u32 v{Lr}, -2, v{Lr}")
    A(f"s_cmp_eq_u32 {sMODE}, 0")
    A("s_mov_b64 exec, 0xf")
    if "s" not in skip:
        mstore([f"global_store_dwordx2 v10, {vr(M_,2)}, {sWS}"]); vm.issue("stats", store=True)
    A(f"ds_write_b32 v11, v{M_} offset:{L_M}")
    A("s_mov_b64 exec, -1")
    for _ in range(smload): load("V", nv); nv += 1
    stamp(8)
    for r in range(32): A(f"v_mov_b32 v{AT[0]+r}, 0")
    def build_at(blk):
        for t in range(4):
            for r in range(4):
                n = 4*((t - r) % 4)
                ctl = f"row_ror:{n}" if n else "quad_perm:[0,1,2,3]"
                A(f"v_mov_b32_dpp v{AT[blk&1]+4*t+r}, v{P+blk} {ctl} row_mask:0xf bank_mask:{1<<t:#x}")
    def perm(blk, r, e):
        A(f"v_perm_b32 v{QD+4*e+r}, v{vreg(8*blk+2*r+1)+(e>>1)}, v{vreg(8*blk+2*r)+(e>>1)}, {sSELHI if e&1 else sSELLO}")
    def pvm(blk, e):
        c = "0" if (blk == 0 and (e & 3) == 0) else vr(O+4*(e>>2),4)
        A(f"v_mfma_f32_16x16x32_bf16 {vr(O+4*(e>>2),4)}, {vr(AT[blk&1]+4*(e&3),4)}, {vr(QD+4*e,4)}, {c}")
    def pv(blk):
        for r in range(3):
            vm.wait(("V", 8*blk+2*r+1))
            for e in range(8): perm(blk, r, e)
        vm.wait(("V", 8*blk+7))
        perm(blk, 3, 0); perm(blk, 3, 1); perm(blk, 3, 2)
        for e in range(8):
            pvm(blk, e)
            if e + 3 < 8: perm(blk, 3, e+3)
    build_at(0); build_at(1)
    while nv < pv0: load("V", nv); nv += 1
    pv(0); build_at(2)
    while nv < pv1: load("V", nv); nv += 1
    pv(1); build_at(3)
    while nv < 32: load("V", nv); nv += 1
    A("s_waitcnt lgkmcnt(0)")
    stamp(9)
    A("s_barrier")
    F = TM + 4
    A(f"s_lshl_b32 {sT0}, {W_}, 4")
    A(f"v_mov_b32 v10, {sT0}")
    A(f"ds_read_b128 {vr(F,4)}, v10 offset:{L_M}")
    A(f"s_lshl_b32 {sT0}, {W_}, 11")
    A(f"v_lshl_add_u32 v12, v0, 2, {sT0}")
    A(f"s_lshl_b32 {sT0}, {W_}, 9")
    A(f"v_lshl_add_u32 v13, v0, 3, {sT0}")
    A(f"s_lshl_b32 {sT0}, {XX}, 15"); A(f"s_lshl_b32 {sT1}, {W_}, 13"); A(f"s_add_u32 {sT0}, {sT0}, {sT1}")
    A(f"s_lshl_b32 {sT1}, {J_}, 6"); A(f"s_add_u32 {sT0}, {sT0}, {sT1}"); A(f"s_add_u32 {sT0}, {sT0}, {IN1}")
    A(f"v_lshl_add_u32 v14, v3, 11, {sT0}")
    A("v_lshl_add_u32 v14, v2, 2, v14")
    A("s_waitcnt lgkmcnt(0)")
    A(f"v_max3_f32 v10, v{F}, v{F+1}, v{F+2}")
    A(f"v_max_f32 v10, v10, v{F+3}")
    for i in range(4): A(f"v_sub_f32 v{F+i}, v{F+i}, v10")
    for i in range(4): A(f"v_mul_f32 v{F+i}, {sL2E}, v{F+i}")
    for i in range(4): A(f"v_exp_f32 v{F+i}, v{F+i}")
    pv(2)
    stamp(10)
    pv(3)
    for h in range(4):
        A(f"ds_write2st64_b32 v12, v{O+h}, v{O+4+h} offset0:{L_O//256+2*h} offset1:{L_O//256+2*h+1}")
    A("s_waitcnt lgkmcnt(0)")
    stamp(11)
    A("s_barrier")
    R = QD
    for w in range(4): A(f"ds_read_b64 {vr(R+2*w,2)}, v13 offset:{L_O+2048*w}")
    A(f"s_cmp_eq_u32 {sMODE}, 0")
    A("s_waitcnt lgkmcnt(0)")
    A(f"v_pk_mul_f32 {vr(R,2)}, {vr(R,2)}, {vr(F,2)} op_sel_hi:[1,0]")
    A(f"v_pk_fma_f32 {vr(R,2)}, {vr(R+2,2)}, {vr(F,2)}, {vr(R,2)} op_sel:[0,1,0] op_sel_hi:[1,1,1]")
    A(f"v_pk_fma_f32 {vr(R,2)}, {vr(R+4,2)}, {vr(F+2,2)}, {vr(R,2)} op_sel_hi:[1,0,1]")
    A(f"v_pk_fma_f32 {vr(R,2)}, {vr(R+6,2)}, {vr(F+2,2)}, {vr(R,2)} op_sel:[0,1,0] op_sel_hi:[1,1,1]")
    A(f"v_cvt_pk_bf16_f32 v{R}, v{R}, v{R+1}")
    A(f"v_min_u32 v{R}, -2, v{R}")
    mstore([f"global_store_dword v14, v{R}, {sWS}"])
    stamp(12)
    if diag:
        A(f"s_cmp_eq_u32 {sMODE}, 0"); A("s_cbranch_scc1 L_dm"); stamp(13); A("L_dm:")
    A("s_barrier")
    A("L_fin:")
    if probe >= 0:
        stamp(14)
        A("s_waitcnt vmcnt(0)")
        stamp(15)
        A("s_waitcnt lgkmcnt(0)")
        A("v_readfirstlane_b32 s40, v1")
        if pwave >= 0:
            A(f"s_cmp_lg_u32 s40, {pwave}"); A("s_cbranch_scc1 L_end")
        if pwg >= 0:
            A(f"s_cmp_lg_u32 s2, {pwg}"); A("s_cbranch_scc1 L_end")
        A("s_sub_u32 s41, s66, s64"); A(f"s_mul_i32 s41, s41, {pmul}"); A("s_add_u32 s41, s41, 4000")
        A("L_spin:")
        A("s_memrealtime s[68:69]"); A("s_waitcnt lgkmcnt(0)")
        A("s_sub_u32 s42, s68, s64"); A("s_cmp_lt_u32 s42, s41"); A("s_cbranch_scc1 L_spin")
    if diag:
        stamp(14)
        A("s_waitcnt vmcnt(0)")
        stamp(15)
        A("s_waitcnt lgkmcnt(0)")
        A("s_mov_b64 exec, 1")
        A("v_readfirstlane_b32 s40, v1")
        A("s_lshl_b32 s41, s2, 3"); A("s_add_u32 s40, s40, s41"); A("s_lshl_b32 s40, s40, 8"); A("s_add_u32 s40, s40, 0x10000000")
        A("v_mov_b32 v2, s40")
        for k in range(16):
            A(f"v_mov_b32 v4, s{64+2*k}"); A(f"v_mov_b32 v5, s{65+2*k}")
            A(f"global_store_dwordx2 v2, v[4:5], {sWS} offset:{8*k}")
            A("s_nop 1")
    A("L_end:")
    A("s_endpgm")
    A('.section .rodata,"a"'); A(".p2align 6"); A(f".amdhsa_kernel {KNAME}")
    A("  .amdhsa_next_free_vgpr 256"); A("  .amdhsa_next_free_sgpr 102"); A("  .amdhsa_accum_offset 256")
    A("  .amdhsa_group_segment_fixed_size 0"); A("  .amdhsa_kernarg_size 96"); A("  .amdhsa_user_sgpr_count 2")
    A("  .amdhsa_user_sgpr_kernarg_segment_ptr 1"); A("  .amdhsa_system_sgpr_workgroup_id_x 1")
    A("  .amdhsa_float_denorm_mode_32 3")
    A(".end_amdhsa_kernel")
    lines = []
    for l in L: lines.extend(l.split("\n"))
    lines = hazard_pass(lines)
    return "\n".join(lines) + "\n"

if __name__ == "__main__":
    ap = argparse.ArgumentParser()
    ap.add_argument("out")
    ap.add_argument("--opt", nargs="*", default=[])
    a = ap.parse_args()
    kw = {}
    for o in a.opt:
        k, v = o.split("=")
        try: v = int(v)
        except ValueError: pass
        kw[k] = v
    open(a.out, "w").write(gen(**kw))
```

```python
import sys, argparse
sys.path.insert(0, "gen")
from asmlib import *

KNAME = "parallel_sum__sliding_block_cached__swiglu_ffn__decode_kernel"
QP    = 0x000000
GP    = 0x040000
CLR   = 0x080000
EPOCH = 0x081000
ST    = 0x088000
IN1   = 0x090000
IN2   = 0x100000
L_PA, L_O, L_Q, L_M, L_MODE, L_CNT, L_X = 0, 4096, 12288, 13312, 13376, 13380, 4096
LDS_BYTES = 13440
LOG2E = 0x3fb8aa3b
SCALE = 0x3db504f3
EPS = 0x3727c5ac
SPIN = 1 << 18

HEADER = open("parallel_sum__sliding_block_cached__swiglu_ffn__decode.s.ref").read().split("; Override launch")[0]

def gen(diag=False, nt="nt", ntw="nt", nB0=3, nVf=12, swz="xorj", fast=1, pollsleep=0, prefetch=1, align=1,
        skip="", qkload=2, smload=2, pv0=19, pv1=27, walk=0, ldsync=1, h1early=1, tlb=0, in2touch=2, pubtouch=0, pxcc=0, probe=-1, pwave=-1, pwg=-1, pmul=4):
    L = []
    A = L.append
    def stamp(k):
        if probe >= 0:
            if k == 0: A("s_memrealtime s[64:65]"); A("s_memrealtime s[66:67]")
            elif k == probe: A("s_memrealtime s[66:67]")
        if diag:
            A(f"s_memrealtime s[{64+2*k}:{65+2*k}]")
            if k == 1:
                for q in range(2, 16): A(f"s_mov_b64 s[{64+2*q}:{65+2*q}], 0")
    uid = [0]
    def lab(p):
        uid[0] += 1
        return f"L_{p}_{uid[0]}"
    DPPF = "row_mask:0xf bank_mask:0xf"
    sX, sK, sV, sWQ, sWO, sG, sU, sWD, sOUT, sDBG, sWS = (f"s[{a}:{a+1}]" for a in (8,10,12,14,16,20,22,24,26,28,30))
    W_, XX, J_, B_, S_ = "s3", "s4", "s5", "s6", "s7"
    sPITCH, sCB, sKH, sFB, sHB = "s32", "s33", "s34", "s35", "s36"
    sSELLO, sSELHI, sHI = "s37", "s38", "s39"
    sT0, sT1, sT2, sT3 = "s40", "s41", "s42", "s43"
    sSPIN = "s44"; sMODE = "s45"
    sPK = "s[46:47]"
    sSAVE = "s[48:49]"
    sTB = "s[50:51]"
    sRB = "s52"; sL2E = "s53"; sTAG = "s56"; sNOA = "s57"

    def unpack(lo, hi, src):
        A(f"v_lshlrev_b32 v{lo}, 16, v{src}")
        A(f"v_and_b32 v{hi}, {sHI}, v{src}")
    def rows_reduce(op, v, t):
        A(f"v_mov_b32 v{t}, v{v}")
        A(f"v_permlane16_swap_b32 v{v}, v{t}")
        A(f"{op} v{v}, v{v}, v{t}")
        A(f"v_mov_b32 v{t}, v{v}")
        A(f"v_permlane32_swap_b32 v{v}, v{t}")
        A(f"{op} v{v}, v{v}, v{t}")
    def max_tree_u32(dst, regs):
        regs = list(regs)
        A(f"v_max3_u32 v{dst}, v{regs[0]}, v{regs[1]}, v{regs[2]}")
        regs = regs[3:]
        while len(regs) >= 2:
            A(f"v_max3_u32 v{dst}, v{dst}, v{regs[0]}, v{regs[1]}"); regs = regs[2:]
        if regs: A(f"v_max_u32 v{dst}, v{dst}, v{regs[0]}")
    def poll(loads, regs, tmp, first_issued=False, tagged=False):
        lp, dn = lab("poll"), lab("pdone")
        def check():
            r = list(regs)
            if tagged:
                if len(r) == 1:
                    A(f"v_cmp_ne_u32 vcc, {sTAG}, v{r[0]}")
                else:
                    A(f"v_xor_b32 v{tmp}, {sTAG}, v{r[0]}")
                    for q in r[1:]: A(f"v_bitop3_b32 v{tmp}, v{q}, {sTAG}, v{tmp} bitop3:0xbe")
                    A(f"v_cmp_ne_u32 vcc, 0, v{tmp}")
            else:
                max_tree_u32(tmp, r)
                A(f"v_cmp_eq_u32 vcc, -1, v{tmp}")
        A(f"s_mov_b32 {sSPIN}, {SPIN}")
        if first_issued:
            chk = lab("pchk"); A(f"s_branch {chk}")
        A(f"{lp}:")
        for l in loads: A(l)
        A("s_waitcnt vmcnt(0)")
        if first_issued: A(f"{chk}:")
        check()
        A(f"s_cbranch_vccz {dn}")
        A("s_mov_b64 exec, vcc")
        if pollsleep: A(f"s_sleep {pollsleep}")
        A(f"s_sub_u32 {sSPIN}, {sSPIN}, 1")
        A(f"s_cbranch_scc0 {lp}")
        A(f"{dn}:")
        A("s_mov_b64 exec, -1")
    def mstore(instrs):
        if not fast:
            for i in instrs: A(i + " sc1")
            return
        sl, dn = lab("slow"), lab("sdone")
        A(f"s_cbranch_scc0 {sl}")
        for i in instrs: A(i)
        A(f"s_branch {dn}")
        A(f"{sl}:")
        for i in instrs: A(i + " sc1")
        A(f"{dn}:")
    def consts():
        A(f"s_mov_b32 {sHI}, 0xffff0000")
        A(f"s_mov_b32 {sSELLO}, 0x05040100"); A(f"s_mov_b32 {sSELHI}, 0x07060302")
        A(f"s_mov_b32 {sL2E}, {LOG2E:#x}")

    A(HEADER.rstrip())
    A(f"; @launch grid=(256,1,1) block=(512,1,1) lds={LDS_BYTES}")
    A('.amdgcn_target "amdgcn-amd-amdhsa--gfx950"')
    A(".text")
    if align:
        A(".p2align 12"); A(f".fill {0xD00//4}, 4, 0xbf810000")
    A(f".globl {KNAME}"); A(".p2align 8"); A(f".type {KNAME},@function"); A(f"{KNAME}:")
    stamp(0)
    A("s_cmp_ge_u32 s2, 256"); A("s_cbranch_scc1 L_end")
    A("s_load_dwordx16 s[8:23], s[0:1], 0")
    A("s_load_dwordx8 s[24:31], s[0:1], 64")
    A("v_lshrrev_b32 v1, 6, v0")
    A("v_and_b32 v0, 63, v0")
    A(f"v_readfirstlane_b32 {W_}, v1")
    A(f"s_and_b32 {XX}, s2, 7")
    A(f"s_lshr_b32 {J_}, s2, 3")
    A("v_and_b32 v2, 15, v0")
    A("v_lshrrev_b32 v3, 4, v0")
    A("v_bfe_u32 v4, v0, 2, 2")
    A("v_and_b32 v5, 3, v0")
    A(f"s_lshr_b32 {B_}, {J_}, 3"); A(f"s_and_b32 {S_}, {J_}, 7")
    A(f"s_cmp_ge_u32 {W_}, 4"); A("s_cbranch_scc1 L_stream")

    vm = VM(A)
    X, XA, T, U, AF, BF, D = 16, 32, 40, 72, 104, 112, 144
    A(f"s_and_b32 {sKH}, {J_}, 1")
    A(f"s_lshr_b32 {sT0}, {J_}, 1")
    A(f"s_lshl_b32 {sT1}, {XX}, 3"); A(f"s_add_u32 {sT1}, {sT1}, {sT0}")
    A(f"s_mul_i32 {sFB}, {XX}, 7"); A(f"s_add_u32 {sFB}, {sFB}, 1"); A(f"s_lshr_b32 {sFB}, {sFB}, 1")
    A(f"s_bfe_u32 {sT2}, {J_}, 0x20002"); A(f"s_add_u32 {sT2}, {sT2}, {sFB}")
    A(f"s_cmp_lt_u32 {J_}, 16")
    A(f"s_cselect_b32 {sCB}, {sT1}, {sT2}")
    A(f"s_movk_i32 {sT3}, 3584")
    A(f"s_cselect_b32 {sPITCH}, 8192, {sT3}")
    A(f"s_lshl_b32 {sT0}, {W_}, 10")
    A(f"v_lshl_add_u32 v6, v0, 4, {sT0}")
    A(f"s_lshl_b32 {sT0}, {sKH}, 2"); A(f"s_add_u32 {sT0}, {sT0}, {W_}"); A(f"s_lshl_b32 {sT0}, {sT0}, 6")
    A(f"v_lshl_add_u32 v7, v3, 4, {sT0}")
    A("v_lshlrev_b32 v8, 1, v7")
    A("v_lshl_add_u32 v8, v4, 10, v8")
    A(f"s_lshl_b32 {sT1}, {sCB}, 7")
    A(f"v_lshl_add_u32 v9, v2, 3, {sT1}")
    A(f"v_mad_u32_u24 v9, v7, {sPITCH}, v9")
    A(f"s_getreg_b32 {sHB}, hwreg(HW_REG_XCC_ID, 0, 4)")
    A(f"s_bitset1_b32 {sHB}, 7")
    A(f"s_lshl_b32 {sT2}, {XX}, 5"); A(f"s_add_u32 {sT3}, {sT2}, {J_}")
    A(f"v_mov_b32 v10, {sT3}"); A(f"v_mov_b32 v11, {sHB}")
    A("v_and_b32 v12, 7, v0")
    A(f"v_lshl_add_u32 v12, v12, 2, {sT2}")
    A(f"s_and_b32 {sNOA}, s2, 0xe1")
    A(f"s_bitcmp1_b32 {J_}, 1")
    A("s_waitcnt lgkmcnt(0)")
    A(f"s_cselect_b64 {sTB}, {sU}, {sG}")
    A(f"s_cmp_lt_u32 {J_}, 16")
    A(f"s_cselect_b64 {sTB}, {sWQ}, {sTB}")
    A(f"global_store_byte v10, v11, {sDBG}")
    A(f"s_load_dword {sTAG}, {sWS}, {EPOCH:#x}")
    A(f"global_load_dwordx4 {vr(X,4)}, v6, {sX}"); vm.issue("x")
    A(f"s_cmp_eq_u32 {sNOA}, 0xe1"); A("s_cbranch_scc1 L_noA")
    for jj in range(16):
        A(f"global_load_dwordx2 {vr(T+2*jj,2)}, v9, {sTB} {ntw}"); vm.issue(("t", jj))
        if jj < 15: A(f"v_add_u32 v9, {sPITCH}, v9")
    stamp(1)
    consts()
    A(f"v_mov_b32 v15, {L_CNT}"); A("v_mov_b32 v13, 0")
    A("ds_write_b32 v15, v13")
    vm.wait("x")
    stamp(2)
    for i in range(4): unpack(U+2*i, U+2*i+1, X+i)
    def wave_sum(dst):
        A(f"v_pk_add_f32 {vr(XA,2)}, {vr(XA,2)}, {vr(XA+2,2)}")
        A(f"v_add_f32 v{dst}, v{XA}, v{XA+1}")
        A(f"v_add_f32_dpp v{dst}, v{dst}, v{dst} quad_perm:[1,0,3,2] {DPPF}")
        A(f"v_add_f32_dpp v{dst}, v{dst}, v{dst} quad_perm:[2,3,0,1] {DPPF}")
        A(f"v_add_f32_dpp v{dst}, v{dst}, v{dst} row_ror:4 {DPPF}")
        A(f"v_add_f32_dpp v{dst}, v{dst}, v{dst} row_ror:8 {DPPF}")
        rows_reduce("v_add_f32", dst, XA+4)
        A(f"v_mul_f32 v{dst}, 0x3b000000, v{dst}")
    A(f"v_pk_add_f32 {vr(XA,2)}, {vr(U,2)}, {vr(U+2,2)}")
    A(f"v_pk_add_f32 {vr(XA+2,2)}, {vr(U+4,2)}, {vr(U+6,2)}")
    wave_sum(10)
    for i in range(4):
        A(f"v_pk_add_f32 {vr(U+8+2*i,2)}, {vr(U+2*i,2)}, v[10:11] op_sel_hi:[1,0] neg_lo:[0,1] neg_hi:[0,1]")
    A(f"v_pk_mul_f32 {vr(XA,2)}, {vr(U+8,2)}, {vr(U+8,2)}")
    A(f"v_pk_mul_f32 {vr(XA+2,2)}, {vr(U+10,2)}, {vr(U+10,2)}")
    A(f"v_pk_fma_f32 {vr(XA,2)}, {vr(U+12,2)}, {vr(U+12,2)}, {vr(XA,2)}")
    A(f"v_pk_fma_f32 {vr(XA+2,2)}, {vr(U+14,2)}, {vr(U+14,2)}, {vr(XA+2,2)}")
    wave_sum(11)
    A("v_cvt_pk_bf16_f32 v13, v10, v11")
    unpack(10, 11, 13)
    A(f"v_add_f32 v11, {EPS:#x}, v11")
    for i in range(4):
        A(f"v_pk_add_f32 {vr(U+2*i,2)}, {vr(U+2*i,2)}, v[10:11] op_sel_hi:[1,0] neg_lo:[0,1] neg_hi:[0,1]")
    A("v_cvt_pk_bf16_f32 v11, v11, v11")
    A("v_lshlrev_b32 v11, 16, v11")
    A("v_sqrt_f32 v11, v11")
    for i in range(4): A(f"v_cvt_pk_bf16_f32 v{X+i}, v{U+2*i}, v{U+2*i+1}")
    A("v_cvt_pk_bf16_f32 v11, v11, v11")
    A("v_lshlrev_b32 v11, 16, v11")
    A("v_rcp_f32 v10, v11")
    for i in range(4): unpack(U+2*i, U+2*i+1, X+i)
    for i in range(4):
        A(f"v_pk_mul_f32 {vr(U+2*i,2)}, {vr(U+2*i,2)}, v[10:11] op_sel_hi:[1,0]")
    for i in range(4): A(f"v_cvt_pk_bf16_f32 v{X+i}, v{U+2*i}, v{U+2*i+1}")
    A(f"ds_write_b128 v6, {vr(X,4)} offset:{L_X}")
    A("s_waitcnt lgkmcnt(0)")
    stamp(3)
    A("s_barrier")
    A(f"global_load_dword v14, v12, {sDBG} sc1"); vm.issue("mode")
    for i in range(2): A(f"ds_read_b128 {vr(AF+4*i,4)}, v8 offset:{L_X+16*i}")
    A("s_waitcnt lgkmcnt(0)")
    for blk in range(2):
        vm.wait(("t", 8*blk+7))
        for e in range(4):
            for r in range(4):
                A(f"v_perm_b32 v{BF+16*blk+4*e+r}, v{T+2*(8*blk+2*r+1)+(e>>1)}, v{T+2*(8*blk+2*r)+(e>>1)}, {sSELHI if e&1 else sSELLO}")
        for e in range(4):
            c = "0" if blk == 0 else vr(D+4*e,4)
            A(f"v_mfma_f32_16x16x32_bf16 {vr(D+4*e,4)}, {vr(AF+4*blk,4)}, {vr(BF+16*blk+4*e,4)}, {c}")
    A(f"ds_write2_b32 v6, v{D}, v{D+4} offset0:0 offset1:1")
    A(f"ds_write2_b32 v6, v{D+8}, v{D+12} offset0:2 offset1:3")
    if ldsync:
        A("v_mov_b32 v13, 1")
        A("s_mov_b64 exec, 1")
        A("ds_add_u32 v15, v13")
        A("s_mov_b64 exec, -1")
    A("s_branch L_B0s")
    A("L_noA:")
    stamp(1)
    consts()
    A("s_waitcnt vmcnt(0)")
    A("s_barrier")
    A(f"global_load_dword v14, v12, {sDBG} sc1")
    A("L_B0s:")
    A("s_waitcnt lgkmcnt(0)")
    stamp(4)
    stamp(5)
    A(f"s_mul_i32 {sTAG}, {sTAG}, 0x0019660d"); A(f"s_add_u32 {sTAG}, {sTAG}, 0x3c6ef35f")
    A(f"s_mul_i32 {sT0}, {sHB}, 0x01010101")
    A(f"s_cmp_eq_u32 {W_}, 1"); A("s_cbranch_scc1 L_w1a")
    A(f"s_cmp_eq_u32 {W_}, 2"); A("s_cbranch_scc1 L_B1s")
    A("s_waitcnt vmcnt(0)")
    A(f"v_cmp_ne_u32 vcc, {sT0}, v14")
    A(f"s_mov_b32 {sMODE}, vcc_lo")
    A(f"s_cmp_eq_u32 {W_}, 3"); A("s_cbranch_scc1 L_clear")
    A(f"s_cmp_eq_u32 {sNOA}, 0xe1"); A("s_cbranch_scc1 L_qduty")
    if ldsync:
        A("L_cnt:")
        A("ds_read_b32 v13, v15")
        A("s_waitcnt lgkmcnt(0)")
        A("v_cmp_ne_u32 vcc, 4, v13")
        A("s_cbranch_vccnz L_cnt")
    A("v_lshlrev_b32 v10, 4, v0")
    for w in range(4): A(f"ds_read_b128 {vr(X+4*w,4)}, v10 offset:{L_PA+1024*w}")
    A(f"s_lshl_b32 {sT0}, {XX}, 15"); A(f"s_lshl_b32 {sT1}, {sKH}, 12"); A(f"s_add_u32 {sT1}, {sT0}, {sT1}")
    A(f"s_and_b32 {sT2}, {sCB}, 7"); A(f"s_lshl_b32 {sT2}, {sT2}, 9"); A(f"s_add_u32 {sT1}, {sT1}, {sT2}")
    A(f"v_lshl_add_u32 v11, v2, 4, {sT1}")
    A("v_lshl_add_u32 v11, v3, 13, v11")
    A("v_add_u32 v12, 256, v11")
    A(f"s_cmp_lt_u32 {J_}, 16"); A("s_cbranch_scc1 L_pubq")
    A(f"s_bfe_u32 {sT1}, {J_}, 0x20002"); A(f"s_lshl_b32 {sT1}, {sT1}, 13"); A(f"s_add_u32 {sT0}, {sT0}, {sT1}")
    A(f"s_and_b32 {sT1}, {J_}, 3"); A(f"s_lshl_b32 {sT1}, {sT1}, 8"); A(f"s_add_u32 {sT0}, {sT0}, {sT1}"); A(f"s_add_u32 {sT0}, {sT0}, {GP}")
    A(f"v_lshl_add_u32 v11, v4, 11, {sT0}")
    A("v_lshl_add_u32 v11, v3, 6, v11")
    A("v_lshl_add_u32 v11, v5, 4, v11")
    A("v_add_u32 v12, 1024, v11")
    A("L_pubq:")
    for i in range(4): A(f"v_mov_b32 v{XA+2*i+1}, {sTAG}")
    A(f"s_cmp_eq_u32 {sMODE}, 0")
    A("s_waitcnt lgkmcnt(0)")
    for h in range(2):
        A(f"v_pk_add_f32 {vr(X+2*h,2)}, {vr(X+2*h,2)}, {vr(X+4+2*h,2)}")
        A(f"v_pk_add_f32 {vr(X+8+2*h,2)}, {vr(X+8+2*h,2)}, {vr(X+12+2*h,2)}")
    for i in range(4): A(f"v_add_f32 v{XA+2*i}, v{X+i}, v{X+8+i}")
    if "p" not in skip:
        mstore([f"global_store_dwordx4 v11, {vr(XA,4)}, {sWS}", f"global_store_dwordx4 v12, {vr(XA+4,4)}, {sWS}"])
    A("s_waitcnt vmcnt(0)")
    A("L_qduty:")
    stamp(6)
    A(f"s_lshl_b32 {sT0}, {XX}, 2"); A(f"s_add_u32 {sT0}, {sT0}, {B_}"); A(f"s_lshl_b32 {sT0}, {sT0}, 13"); A(f"s_add_u32 {sT0}, {sT0}, {QP+4096}")
    A(f"v_lshl_add_u32 v10, v0, 4, {sT0}")
    if "q" not in skip:
        poll([f"global_load_dwordx4 {vr(U+4*i,4)}, v10, {sWS} offset:{1024*i-4096} sc1" for i in range(8)], range(U+1, U+32, 2), 11, tagged=True)
    for i in range(8): A(f"v_add_f32 v{U+2*i}, v{U+2*i}, v{U+16+2*i}")
    for h in range(4): A(f"v_cvt_pk_bf16_f32 v{X+h}, v{U+4*h}, v{U+4*h+2}")
    A("v_and_b32 v10, 32, v0"); A("v_and_b32 v11, 1, v3")
    A("v_add_u32 v10, v10, v11")
    A("v_lshl_add_u32 v10, v2, 1, v10")
    A("v_lshlrev_b32 v10, 2, v10")
    A(f"ds_write2st64_b32 v10, v{X}, v{X+1} offset0:{L_Q//256} offset1:{L_Q//256+1}")
    A(f"ds_write2st64_b32 v10, v{X+2}, v{X+3} offset0:{L_Q//256+2} offset1:{L_Q//256+3}")
    A("s_branch L_B1s")
    A("L_w1a:")
    if prefetch:
        A(f"s_cmp_lg_u32 {J_}, 31"); A("s_cbranch_scc1 L_B1s")
        A(f"s_getpc_b64 {sSAVE}")
        A("L_pc:")
        A("v_lshlrev_b32 v10, 7, v0")
        A("v_add_u32 v11, 0x2000, v10")
        A("v_min_u32 v10, L_end-L_pc, v10")
        A("v_min_u32 v11, L_end-L_pc, v11")
        A(f"global_load_dword v250, v10, {sSAVE}")
        A(f"global_load_dword v251, v11, {sSAVE}")
    A("s_branch L_B1s")
    A("L_clear:")
    A(f"v_mov_b32 v13, {sMODE}"); A(f"v_mov_b32 v15, {L_MODE}")
    A("ds_write_b32 v15, v13")
    for i in range(4): A(f"v_mov_b32 v{X+i}, -1")
    A(f"s_lshl_b32 {sT0}, {XX}, 15"); A(f"s_lshl_b32 {sT1}, {J_}, 6"); A(f"s_add_u32 {sT0}, {sT0}, {sT1}"); A(f"s_add_u32 {sT0}, {sT0}, {IN1}")
    A("v_lshrrev_b32 v10, 2, v0")
    A(f"v_lshl_add_u32 v10, v10, 11, {sT0}")
    A("v_lshl_add_u32 v10, v5, 4, v10")
    A(f"s_lshl_b32 {sT0}, {XX}, 12"); A(f"s_lshl_b32 {sT1}, {J_}, 5"); A(f"s_add_u32 {sT0}, {sT0}, {sT1}"); A(f"s_add_u32 {sT0}, {sT0}, {ST}")
    A("v_bfe_u32 v11, v0, 3, 2"); A("v_and_b32 v12, 7, v0")
    A(f"v_lshl_add_u32 v11, v11, 10, {sT0}")
    A("v_lshl_add_u32 v11, v12, 2, v11")
    A(f"s_lshl_b32 {sT1}, {XX}, 5"); A(f"s_add_u32 {sT1}, {sT1}, {J_}"); A(f"s_lshl_b32 {sT1}, {sT1}, 2"); A(f"s_add_u32 {sT1}, {sT1}, {CLR}")
    A(f"v_mov_b32 v12, {sT1}"); A(f"v_mov_b32 v13, {sTAG}")
    A(f"s_cmp_eq_u32 {sMODE}, 0")
    if "c" not in skip:
        mstore([f"global_store_dwordx4 v10, {vr(X,4)}, {sWS}", f"global_store_dword v11, v{X}, {sWS}"])
    A("s_waitcnt vmcnt(0)")
    A("s_mov_b64 exec, 1")
    mstore([f"global_store_dword v12, v13, {sWS}"])
    A("s_mov_b64 exec, -1")
    A("L_B1s:")
    A("s_waitcnt lgkmcnt(0)")
    stamp(7)
    A("s_barrier")
    AD, AO, AS, AH1, AH2, AOUT, AIN2, ALW, XV = 160, 161, 162, 163, 164, 165, 166, 167, 168
    STT, WD, WO, HF, WT, BD, BO, DH, OA, DO = 24, 28, 36, 52, 56, 64, 72, 88, 104, 112
    Y = 144
    A(f"s_lshl_b32 {sRB}, {XX}, 2"); A(f"s_add_u32 {sRB}, {sRB}, {B_}")
    A(f"s_lshl_b32 {sT3}, {sRB}, 2"); A(f"s_add_u32 {sT3}, {sT3}, {W_}"); A(f"s_lshl_b32 {sT3}, {sT3}, 11")
    A(f"s_lshl_b32 {sT0}, {XX}, 7"); A(f"s_add_u32 {sT0}, {sT0}, {CLR}")
    A("v_and_b32 v13, 31, v0")
    A(f"v_lshl_add_u32 v13, v13, 2, {sT0}")
    cl = [f"global_load_dword v{Y+8}, v13, {sWS} sc1"]
    A(f"s_add_u32 {sT0}, {sT3}, {GP}")
    A(f"v_lshl_add_u32 v10, v5, 8, {sT0}")
    A("v_lshl_add_u32 v10, v4, 6, v10")
    A("v_lshl_add_u32 v10, v3, 4, v10")
    hl = [f"global_load_dwordx4 {vr(Y+4*i,4)}, v10, {sWS} offset:{1024*i} sc1" for i in range(2)]
    A(f"v_mov_b32 v{HF}, 0"); A(f"v_mov_b32 v{HF+1}, 0")
    A(f"s_and_b32 {sNOA}, s2, 0xc1")
    A(f"s_cmp_eq_u32 {sNOA}, 0xc1"); A("s_cbranch_scc1 L_noh")
    if "h" not in skip:
        poll(cl + hl, [Y+8, Y+1, Y+3, Y+5, Y+7], 11, tagged=True)
    for i in range(4): A(f"v_add_f32_dpp v{X+i}, v{Y+2*i}, v{Y+2*i} quad_perm:[1,0,3,2] {DPPF}")
    for i in range(2): A(f"v_cvt_pk_bf16_f32 v{X+4+i}, v{X+2*i}, v{X+2*i+1}")
    for i in range(2): unpack(X+2*i, X+2*i+1, X+4+i)
    for i in range(4): A(f"v_mul_f32 v{X+4+i}, {sL2E}, v{X+i}")
    for i in range(4): A(f"v_exp_f32 v{X+4+i}, -v{X+4+i}")
    for i in range(4): A(f"v_add_f32 v{X+4+i}, 1.0, v{X+4+i}")
    for i in range(4): A(f"v_rcp_f32 v{X+4+i}, v{X+4+i}")
    for i in range(4): A(f"v_mul_f32 v{X+4+i}, v{X+i}, v{X+4+i}")
    for i in range(2): A(f"v_cvt_pk_bf16_f32 v{Y+i}, v{X+4+2*i}, v{X+5+2*i}")
    for i in range(2): unpack(X+4+2*i, X+5+2*i, Y+i)
    for i in range(4): A(f"v_mul_f32_dpp v{X+4+i}, v{X+i}, v{X+4+i} quad_perm:[2,3,0,1] {DPPF}")
    A("v_cmp_eq_u32 vcc, 0, v5")
    for i in range(2): A(f"v_cvt_pk_bf16_f32 v{HF+i}, v{X+4+2*i}, v{X+5+2*i}")
    for i in range(2): A(f"v_cndmask_b32 v{HF+i}, 0, v{HF+i}, vcc")
    A("s_branch L_hdone")
    A("L_noh:")
    if "h" not in skip:
        poll(cl, [Y+8], 11, tagged=True)
    A("L_hdone:")
    A(f"s_lshl_b32 {sT1}, {S_}, 7")
    A(f"v_lshl_add_u32 v10, v2, 3, {sT1}")
    A(f"s_add_u32 {sT2}, {sFB}, {B_}"); A(f"s_lshl_b32 {sT2}, {sT2}, 2"); A(f"s_add_u32 {sT2}, {sT2}, {W_}"); A(f"s_lshl_b32 {sT2}, {sT2}, 14")
    A(f"v_lshl_add_u32 v11, v3, 12, {sT2}")
    A(f"v_add_u32 v{AD}, v11, v10")
    A(f"s_lshl_b32 {sT2}, {sRB}, 7")
    A(f"s_lshl_b32 {sT0}, {W_}, 1"); A(f"s_add_u32 {sT2}, {sT2}, {sT0}")
    A("v_and_b32 v11, 1, v3"); A("v_lshrrev_b32 v12, 1, v3")
    A("v_lshl_add_u32 v11, v11, 6, v12")
    A(f"v_add_u32 v11, {sT2}, v11")
    A(f"v_lshl_add_u32 v{AO}, v11, 10, v10")
    A(f"s_lshl_b32 {sT2}, {sRB}, 10"); A(f"s_add_u32 {sT2}, {sT2}, {ST}")
    A(f"v_lshl_add_u32 v{AS}, v0, 4, {sT2}")
    A(f"s_add_u32 {sT2}, {sT3}, {IN1}")
    A(f"v_lshl_add_u32 v11, v4, 9, {sT2}")
    A("v_lshl_add_u32 v11, v5, 6, v11")
    A(f"v_lshl_add_u32 v{AH1}, v3, 4, v11")
    A(f"s_lshl_b32 {sT2}, {S_}, 14"); A(f"s_lshr_b32 {sT0}, {W_}, 1"); A(f"s_lshl_b32 {sT1}, {sT0}, 11"); A(f"s_add_u32 {sT2}, {sT2}, {sT1}")
    A(f"s_lshl_b32 {sT1}, {sRB}, 6"); A(f"s_add_u32 {sT2}, {sT2}, {sT1}"); A(f"s_add_u32 {sT2}, {sT2}, {IN2}")
    A(f"v_lshl_add_u32 v11, v4, 12, {sT2}")
    A("v_lshl_add_u32 v11, v5, 4, v11")
    A(f"v_lshl_add_u32 v{AH2}, v3, 17, v11")
    A(f"s_lshl_b32 {sT1}, {W_}, 10")
    A(f"v_lshl_add_u32 v{ALW}, v0, 4, {sT1}")
    A(f"s_lshl_b32 {sT0}, {sT0}, 3")
    A(f"v_lshl_add_u32 v{XV+1}, v0, 4, {sT0}")
    A(f"s_lshr_b32 {sT0}, s2, 1"); A(f"s_lshl_b32 {sT0}, {sT0}, 4"); A(f"s_and_b32 {sT1}, s2, 1"); A(f"s_lshl_b32 {sT1}, {sT1}, 1"); A(f"s_add_u32 {sT0}, {sT0}, {sT1}")
    A("v_lshrrev_b32 v11, 5, v0")
    A("v_lshl_add_u32 v11, v5, 2, v11")
    A(f"v_add_lshl_u32 v{AOUT}, v11, {sT0}, 1")
    A(f"s_lshl_b32 {sT0}, s2, 11"); A(f"s_add_u32 {sT0}, {sT0}, {IN2}")
    A(f"v_lshl_add_u32 v{AIN2}, v0, 4, {sT0}")
    A(f"s_cmp_lg_u32 {W_}, 1"); A("s_cbranch_scc1 L_nox")
    A(f"global_load_ushort v{XV}, v{AOUT}, {sX}")
    if in2touch == 2:
        A(f"s_add_u32 s58, s30, {sT0}"); A("s_addc_u32 s59, s31, 0")
        for i in range(16):
            A(f"s_load_dword s60, s[58:59], {128*i}")
            if i == 7: A("s_waitcnt lgkmcnt(0)")
        A("s_waitcnt lgkmcnt(0)")
    if in2touch == 1:
        A(f"global_load_dwordx4 v[240:243], v{AIN2}, {sWS} sc1")
        A(f"global_load_dwordx4 v[244:247], v{AIN2}, {sWS} offset:1024 sc1")
    A("L_nox:")
    if pubtouch:
        if pubtouch == 1:
            A("s_mov_b32 exec_lo, 0x00010001"); A("s_mov_b32 exec_hi, 0x00010001")
        A(f"global_load_dword v240, v{AH2}, {sWS} nt")
        A(f"global_load_dword v241, v{AIN2}, {sWS} nt")
        A("s_mov_b64 exec, -1")
    for r in range(8): A(f"v_mov_b32 v{WD+r}, 0")
    A(f"s_movk_i32 {sT0}, 0x2000")
    A(f"s_cmp_eq_u32 {sNOA}, 0xc1")
    stamp(8)
    A("s_barrier")
    vm = VM(A)
    stl = f"global_load_dwordx4 {vr(STT,4)}, v{AS}, {sWS} sc1"
    h1l = [f"global_load_dwordx4 {vr(OA+4*sh,4)}, v{AH1}, {sWS} offset:{256*sh} sc1" for sh in range(2)]
    A(stl); vm.issue("st")
    A("s_cbranch_scc1 L_nowd")
    for jj in range(4):
        A(f"global_load_dwordx2 {vr(WD+2*jj,2)}, v{AD}, {sWD} offset:{1024*jj} {ntw}")
    A("L_nowd:")
    for jj in range(8):
        A(f"global_load_dwordx2 {vr(WO+2*jj,2)}, v{AO}, {sWO} {ntw}"); vm.issue(("wo", jj))
        if jj < 7: A(f"v_add_u32 v{AO}, {sT0}, v{AO}")
    stamp(9)
    A("s_barrier")
    vm.wait("st")
    poll([stl], range(STT, STT+4), 11, first_issued=True)
    m0, l0, m1, l1 = STT, STT+1, STT+2, STT+3
    A(f"v_max_f32 v10, v{m0}, v{m1}")
    def wdperm(e):
        for r in range(2):
            A(f"v_perm_b32 v{BD+2*e+r}, v{WD+2*(2*r+1)+(e>>1)}, v{WD+2*(2*r)+(e>>1)}, {sSELHI if e&1 else sSELLO}")
    wdperm(0)
    A(f"v_max_f32_dpp v10, v10, v10 quad_perm:[1,0,3,2] {DPPF}")
    wdperm(1)
    A(f"v_max_f32_dpp v11, v10, v10 quad_perm:[2,3,0,1] {DPPF}")
    wdperm(2)
    A(f"v_max_f32_dpp v11, v11, v11 row_ror:4 {DPPF}")
    wdperm(3)
    A(f"v_max_f32_dpp v11, v11, v11 row_ror:8 {DPPF}")
    A(f"v_sub_f32 v{m0}, v{m0}, v11"); A(f"v_sub_f32 v{m1}, v{m1}, v11"); A("v_sub_f32 v10, v10, v11")
    A(f"v_mul_f32 v{m0}, {sL2E}, v{m0}"); A(f"v_mul_f32 v{m1}, {sL2E}, v{m1}"); A(f"v_mul_f32 v10, {sL2E}, v10")
    A(f"v_exp_f32 v{m0}, v{m0}"); A(f"v_exp_f32 v{m1}, v{m1}"); A("v_exp_f32 v10, v10")
    A(f"v_mul_f32 v12, v{m0}, v{l0}")
    A(f"v_fmac_f32 v12, v{m1}, v{l1}")
    def dhm(e): A(f"v_mfma_f32_16x16x16_bf16 {vr(DH+4*e,4)}, {vr(HF,2)}, {vr(BD+2*e,2)}, 0")
    dhm(0)
    A(f"v_add_f32_dpp v12, v12, v12 quad_perm:[1,0,3,2] {DPPF}")
    dhm(1)
    A(f"v_add_f32_dpp v12, v12, v12 quad_perm:[2,3,0,1] {DPPF}")
    dhm(2)
    A(f"v_add_f32_dpp v12, v12, v12 row_ror:4 {DPPF}")
    dhm(3)
    A(f"v_add_f32_dpp v12, v12, v12 row_ror:8 {DPPF}")
    A("v_rcp_f32 v12, v12")
    A("v_mul_f32 v10, v10, v12")
    for s in range(8): A(f"v_mov_b32_dpp v{WT+s}, v10 row_newbcast:{2*s} {DPPF}")
    stamp(10)
    if h1early:
        if h1early == 1: vm.wait(("wo", 3))
        for l in h1l: A(l); vm.issue("h1")
        vm.wait(("wo", 7))
    else:
        vm.wait(("wo", 7))
        for l in h1l: A(l)
    for e in range(4):
        for r in range(4):
            A(f"v_perm_b32 v{BO+4*e+r}, v{WO+2*(2*r+1)+(e>>1)}, v{WO+2*(2*r)+(e>>1)}, {sSELHI if e&1 else sSELLO}")
    stamp(11)
    vm.wait_all()
    poll(h1l, range(OA, OA+8), 11, first_issued=True)
    stamp(12)
    for sh in range(2):
        for e in range(4):
            A(f"v_mfma_f32_16x16x32_bf16 {vr(DO+16*sh+4*e,4)}, {vr(OA+4*sh,4)}, {vr(BO+4*e,4)}, 0")
    for sh in range(2):
        for hh in range(2):
            for e in range(4):
                A(f"v_pk_fma_f32 {vr(DH+4*e,2)}, {vr(DO+16*sh+4*e+2*hh,2)}, {vr(WT+4*sh+2*hh,2)}, {vr(DH+4*e,2)}")
    for e in range(4): A(f"v_add_f32 v{STT+e}, v{DH+4*e}, v{DH+4*e+1}")
    A(f"ds_write_b128 v{ALW}, {vr(STT,4)} offset:{L_PA}")
    A(f"s_bitcmp1_b32 {W_}, 0")
    A("s_waitcnt lgkmcnt(0)")
    A("s_barrier")
    A("s_cbranch_scc1 L_odd")
    for w in range(4): A(f"ds_read_b64 {vr(DO+2*w,2)}, v{XV+1} offset:{L_PA+1024*w}")
    A(f"v_mov_b32 v{STT+1}, {sTAG}"); A(f"v_mov_b32 v{STT+3}, {sTAG}")
    A("s_waitcnt lgkmcnt(0)")
    A(f"v_pk_add_f32 {vr(DO,2)}, {vr(DO,2)}, {vr(DO+2,2)}")
    A(f"v_pk_add_f32 {vr(DO+4,2)}, {vr(DO+4,2)}, {vr(DO+6,2)}")
    A(f"v_add_f32 v{STT}, v{DO}, v{DO+4}")
    A(f"v_add_f32 v{STT+2}, v{DO+1}, v{DO+5}")
    A(f"global_store_dwordx4 v{AH2}, {vr(STT,4)}, {sWS} sc1")
    stamp(13)
    A("s_branch L_fin")
    A("L_odd:")
    A(f"s_cmp_lg_u32 {W_}, 1"); A("s_cbranch_scc1 L_fin")
    G = 16
    poll([f"global_load_dwordx4 {vr(G+4*i,4)}, v{AIN2}, {sWS} offset:{1024*i} sc1" for i in range(2)], [G+1, G+3, G+5, G+7], 13, tagged=True)
    stamp(13)
    A(f"v_add_f32 v{G}, v{G}, v{G+4}")
    A(f"v_add_f32 v{G+2}, v{G+2}, v{G+6}")
    A(f"v_lshlrev_b32 v{XV}, 16, v{XV}")
    A(f"v_permlane32_swap_b32 v{G}, v{G+2}")
    A(f"v_add_f32 v{G}, v{G}, v{G+2}")
    A(f"v_add_f32_dpp v{G}, v{G}, v{G} row_ror:8 {DPPF}")
    A(f"v_add_f32_dpp v{G}, v{G}, v{G} row_ror:4 {DPPF}")
    A(f"v_mov_b32 v{G+1}, v{G}")
    A(f"v_permlane16_swap_b32 v{G}, v{G+1}")
    A(f"v_add_f32 v{G}, v{G}, v{G+1}")
    A(f"v_add_f32 v{G}, v{G}, v{XV}")
    A(f"v_cvt_pk_bf16_f32 v{G}, v{G}, v{G}")
    A("s_mov_b32 exec_lo, 0xf"); A("s_mov_b32 exec_hi, 0xf")
    A(f"global_store_short v{AOUT}, v{G}, {sOUT}")
    A("s_cmp_lg_u32 s2, 0"); A("s_cbranch_scc1 L_fin")
    A("s_mov_b64 exec, 1")
    A(f"v_mov_b32 v10, {EPOCH}"); A(f"v_mov_b32 v11, {sTAG}")
    A(f"global_store_dword v10, v11, {sWS}")
    A("s_branch L_fin")

    A("L_stream:")
    vm = VM(A)
    KR, VF, S, Q, QD, O, P, TM = 16, 144, 192, 200, 204, 236, 244, 248
    def kreg(i): return KR + 4*i
    def vreg(i): return VF + 4*i if i < nVf else KR + 4*(i - nVf)
    AT = [KR + 4*(32 - nVf), KR + 4*(32 - nVf) + 16]
    assert nVf >= 8 and nVf <= 12
    A(f"s_sub_u32 {W_}, {W_}, 4")
    A(f"s_lshl_b32 {sT0}, {B_}, 3"); A(f"s_add_u32 {sT0}, {sT0}, {XX}"); A(f"s_lshl_b32 {sT0}, {sT0}, 22")
    A(f"s_lshl_b32 {sT1}, {S_}, 17"); A(f"s_add_u32 {sT0}, {sT0}, {sT1}"); A(f"s_add_u32 {sT0}, {sT0}, {12288*256}")
    A(f"s_lshl_b32 {sT1}, {W_}, 10")
    if swz == "xorj":
        A(f"s_lshl_b32 {sT2}, {J_}, 12"); A(f"s_add_u32 {sT1}, {sT1}, {sT2}")
    elif swz == "xor7":
        A(f"s_add_u32 {sT2}, {J_}, {XX}"); A(f"s_and_b32 {sT2}, {sT2}, 7"); A(f"s_lshl_b32 {sT2}, {sT2}, 12"); A(f"s_add_u32 {sT1}, {sT1}, {sT2}")
    A(f"v_lshl_add_u32 v6, v0, 4, {sT1}")
    A(f"v_lshl_add_u32 v7, v5, 4, {sT1}")
    A("v_lshl_add_u32 v7, v4, 8, v7")
    A("v_lshl_add_u32 v7, v3, 6, v7")
    A("s_waitcnt lgkmcnt(0)")
    A(f"s_add_u32 s10, s10, {sT0}"); A("s_addc_u32 s11, s11, 0")
    A(f"s_add_u32 s12, s12, {sT0}"); A("s_addc_u32 s13, s13, 0")
    stamp(1)
    if tlb:
        A("s_mov_b64 exec, 1")
        A(f"s_cmp_lg_u32 {W_}, 0"); A("s_cbranch_scc1 L_notlb")
        A(f"s_lshl_b32 {sT0}, {XX}, 19"); A(f"v_mov_b32 v8, {sT0}")
        A(f"s_mul_i32 {sT0}, {XX}, {224*1024}"); A(f"v_mov_b32 v9, {sT0}")
        A(f"v_mov_b32 v10, {IN2}")
        A(f"global_load_dword v252, v6, {sV} {nt}")
        A(f"global_load_dword v253, v8, {sWO} {nt}")
        A(f"global_load_dword v254, v9, {sWD} {nt}")
        A(f"global_load_dword v255, v10, {sWS} {nt}")
        A("L_notlb:")
        A("s_mov_b64 exec, -1")
    nld = [0]
    def load(which, i):
        t = 8 + (nld[0] & 1); nld[0] += 1
        src, base, r = (7, sK, kreg(i)) if which == "K" else (6, sV, vreg(i))
        if i == 0: t = src
        else: A(f"v_xor_b32 v{t}, {4096*i:#x}, v{src}")
        A(f"global_load_dwordx4 {vr(r,4)}, v{t}, {base} {nt}"); vm.issue((which, i))
    for i in range(nB0): load("K", i)
    stamp(4)
    A("s_barrier")
    stamp(5)
    for i in range(nB0, 32): load("K", i)
    for i in range(nVf): load("V", i)
    consts()
    A("v_lshlrev_b32 v10, 8, v5")
    A("v_lshl_add_u32 v10, v3, 6, v10")
    A("v_lshl_add_u32 v10, v4, 4, v10")
    A(f"v_mov_b32 v11, {L_MODE}")
    stamp(6)
    A("s_barrier")
    stamp(7)
    A(f"ds_read_b128 {vr(Q,4)}, v10 offset:{L_Q}")
    A("ds_read_b32 v11, v11")
    A("s_waitcnt lgkmcnt(0)")
    A(f"v_readfirstlane_b32 {sMODE}, v11")
    def extract(i):
        d = QD + 4*(i % 8); s = S + (i & 1) + 2*(i >> 3); t = (i >> 1) & 3
        ops = []; first = True
        for v in range(4):
            if v == t: continue
            n = 4*((t - v) % 4)
            src1 = d + t if first else s
            ops.append(f"v_add_f32_dpp v{s}, v{d+v}, v{src1} row_ror:{n} row_mask:0xf bank_mask:{1<<t:#x}")
            first = False
        return ops
    def qk(i):
        vm.wait(("K", i))
        A(f"v_mfma_f32_16x16x32_bf16 {vr(QD+4*(i%8),4)}, {vr(kreg(i),4)}, {vr(Q,4)}, 0")
    for i in range(4): qk(i)
    for i in range(0, 32, 2):
        a, b = extract(i), extract(i+1)
        A(a[0]); A(b[0])
        if i + 4 < 32: qk(i+4)
        A(a[1]); A(b[1])
        if i + 5 < 32: qk(i+5)
        A(a[2]); A(b[2])
    nv = nVf
    stamp(2)
    for _ in range(qkload): load("V", nv); nv += 1
    stamp(3)
    A(f"s_mov_b32 s46, {SCALE:#x}"); A(f"s_mov_b32 s47, {SCALE:#x}")
    for i in range(4): A(f"v_cvt_pk_bf16_f32 v{P+i}, v{S+2*i}, v{S+2*i+1}")
    for i in range(4): unpack(S+2*i, S+2*i+1, P+i)
    for i in range(4): A(f"v_pk_mul_f32 {vr(S+2*i,2)}, {vr(S+2*i,2)}, {sPK}")
    for i in range(4): A(f"v_cvt_pk_bf16_f32 v{P+i}, v{S+2*i}, v{S+2*i+1}")
    for i in range(4): unpack(S+2*i, S+2*i+1, P+i)
    M_, Lr = TM, TM+1
    A(f"v_max3_f32 v{M_}, v{S}, v{S+1}, v{S+2}")
    A(f"v_max3_f32 v{TM+2}, v{S+3}, v{S+4}, v{S+5}")
    A(f"v_max3_f32 v{M_}, v{M_}, v{S+6}, v{S+7}")
    A(f"v_max_f32 v{M_}, v{M_}, v{TM+2}")
    A(f"v_max_f32_dpp v{M_}, v{M_}, v{M_} row_ror:4 {DPPF}")
    A(f"v_max_f32_dpp v{M_}, v{M_}, v{M_} row_ror:8 {DPPF}")
    rows_reduce("v_max_f32", M_, TM+2)
    A(f"s_mov_b32 s46, {LOG2E:#x}"); A(f"s_mov_b32 s47, {LOG2E:#x}")
    for i in range(4):
        A(f"v_pk_add_f32 {vr(S+2*i,2)}, {vr(S+2*i,2)}, {vr(M_,2)} op_sel_hi:[1,0] neg_lo:[0,1] neg_hi:[0,1]")
    for i in range(4): A(f"v_pk_mul_f32 {vr(S+2*i,2)}, {vr(S+2*i,2)}, {sPK}")
    for i in range(8): A(f"v_exp_f32 v{S+i}, v{S+i}")
    for i in range(4): A(f"v_cvt_pk_bf16_f32 v{P+i}, v{S+2*i}, v{S+2*i+1}")
    A(f"v_pk_add_f32 {vr(S,2)}, {vr(S,2)}, {vr(S+2,2)}")
    A(f"v_pk_add_f32 {vr(S+4,2)}, {vr(S+4,2)}, {vr(S+6,2)}")
    A(f"v_pk_add_f32 {vr(S,2)}, {vr(S,2)}, {vr(S+4,2)}")
    A(f"v_add_f32 v{Lr}, v{S}, v{S+1}")
    A(f"v_add_f32_dpp v{Lr}, v{Lr}, v{Lr} row_ror:4 {DPPF}")
    A(f"v_add_f32_dpp v{Lr}, v{Lr}, v{Lr} row_ror:8 {DPPF}")
    rows_reduce("v_add_f32", Lr, TM+2)
    A(f"s_lshl_b32 {sT0}, {XX}, 12"); A(f"s_lshl_b32 {sT1}, {J_}, 5"); A(f"s_add_u32 {sT0}, {sT0}, {sT1}")
    A(f"s_lshl_b32 {sT1}, {W_}, 3"); A(f"s_add_u32 {sT0}, {sT0}, {sT1}"); A(f"s_add_u32 {sT0}, {sT0}, {ST}")
    A(f"v_lshl_add_u32 v10, v5, 10, {sT0}")
    A(f"s_lshl_b32 {sT1}, {W_}, 2")
    A(f"v_lshl_add_u32 v11, v5, 4, {sT1}")
    A(f"v_min_u32 v{M_}, -2, v{M_}"); A(f"v_min_u32 v{Lr}, -2, v{Lr}")
    A(f"s_cmp_eq_u32 {sMODE}, 0")
    A("s_mov_b64 exec, 0xf")
    if "s" not in skip:
        mstore([f"global_store_dwordx2 v10, {vr(M_,2)}, {sWS}"]); vm.issue("stats", store=True)
    A(f"ds_write_b32 v11, v{M_} offset:{L_M}")
    A("s_mov_b64 exec, -1")
    for _ in range(smload): load("V", nv); nv += 1
    stamp(8)
    for r in range(32): A(f"v_mov_b32 v{AT[0]+r}, 0")
    def build_at(blk):
        for t in range(4):
            for r in range(4):
                n = 4*((t - r) % 4)
                ctl = f"row_ror:{n}" if n else "quad_perm:[0,1,2,3]"
                A(f"v_mov_b32_dpp v{AT[blk&1]+4*t+r}, v{P+blk} {ctl} row_mask:0xf bank_mask:{1<<t:#x}")
    def perm(blk, r, e):
        A(f"v_perm_b32 v{QD+4*e+r}, v{vreg(8*blk+2*r+1)+(e>>1)}, v{vreg(8*blk+2*r)+(e>>1)}, {sSELHI if e&1 else sSELLO}")
    def pvm(blk, e):
        c = "0" if (blk == 0 and (e & 3) == 0) else vr(O+4*(e>>2),4)
        A(f"v_mfma_f32_16x16x32_bf16 {vr(O+4*(e>>2),4)}, {vr(AT[blk&1]+4*(e&3),4)}, {vr(QD+4*e,4)}, {c}")
    def pv(blk):
        for r in range(3):
            vm.wait(("V", 8*blk+2*r+1))
            for e in range(8): perm(blk, r, e)
        vm.wait(("V", 8*blk+7))
        perm(blk, 3, 0); perm(blk, 3, 1); perm(blk, 3, 2)
        for e in range(8):
            pvm(blk, e)
            if e + 3 < 8: perm(blk, 3, e+3)
    build_at(0); build_at(1)
    while nv < pv0: load("V", nv); nv += 1
    pv(0); build_at(2)
    while nv < pv1: load("V", nv); nv += 1
    pv(1); build_at(3)
    while nv < 32: load("V", nv); nv += 1
    A("s_waitcnt lgkmcnt(0)")
    stamp(9)
    A("s_barrier")
    F = TM + 4
    A(f"s_lshl_b32 {sT0}, {W_}, 4")
    A(f"v_mov_b32 v10, {sT0}")
    A(f"ds_read_b128 {vr(F,4)}, v10 offset:{L_M}")
    A(f"s_lshl_b32 {sT0}, {W_}, 11")
    A(f"v_lshl_add_u32 v12, v0, 2, {sT0}")
    A(f"s_lshl_b32 {sT0}, {W_}, 9")
    A(f"v_lshl_add_u32 v13, v0, 3, {sT0}")
    A(f"s_lshl_b32 {sT0}, {XX}, 15"); A(f"s_lshl_b32 {sT1}, {W_}, 13"); A(f"s_add_u32 {sT0}, {sT0}, {sT1}")
    A(f"s_lshl_b32 {sT1}, {J_}, 6"); A(f"s_add_u32 {sT0}, {sT0}, {sT1}"); A(f"s_add_u32 {sT0}, {sT0}, {IN1}")
    A(f"v_lshl_add_u32 v14, v3, 11, {sT0}")
    A("v_lshl_add_u32 v14, v2, 2, v14")
    A("s_waitcnt lgkmcnt(0)")
    A(f"v_max3_f32 v10, v{F}, v{F+1}, v{F+2}")
    A(f"v_max_f32 v10, v10, v{F+3}")
    for i in range(4): A(f"v_sub_f32 v{F+i}, v{F+i}, v10")
    for i in range(4): A(f"v_mul_f32 v{F+i}, {sL2E}, v{F+i}")
    for i in range(4): A(f"v_exp_f32 v{F+i}, v{F+i}")
    pv(2)
    stamp(10)
    pv(3)
    for h in range(4):
        A(f"ds_write2st64_b32 v12, v{O+h}, v{O+4+h} offset0:{L_O//256+2*h} offset1:{L_O//256+2*h+1}")
    A("s_waitcnt lgkmcnt(0)")
    stamp(11)
    A("s_barrier")
    R = QD
    for w in range(4): A(f"ds_read_b64 {vr(R+2*w,2)}, v13 offset:{L_O+2048*w}")
    A(f"s_cmp_eq_u32 {sMODE}, 0")
    A("s_waitcnt lgkmcnt(0)")
    A(f"v_pk_mul_f32 {vr(R,2)}, {vr(R,2)}, {vr(F,2)} op_sel_hi:[1,0]")
    A(f"v_pk_fma_f32 {vr(R,2)}, {vr(R+2,2)}, {vr(F,2)}, {vr(R,2)} op_sel:[0,1,0] op_sel_hi:[1,1,1]")
    A(f"v_pk_fma_f32 {vr(R,2)}, {vr(R+4,2)}, {vr(F+2,2)}, {vr(R,2)} op_sel_hi:[1,0,1]")
    A(f"v_pk_fma_f32 {vr(R,2)}, {vr(R+6,2)}, {vr(F+2,2)}, {vr(R,2)} op_sel:[0,1,0] op_sel_hi:[1,1,1]")
    A(f"v_cvt_pk_bf16_f32 v{R}, v{R}, v{R+1}")
    A(f"v_min_u32 v{R}, -2, v{R}")
    mstore([f"global_store_dword v14, v{R}, {sWS}"])
    stamp(12)
    if diag:
        A(f"s_cmp_eq_u32 {sMODE}, 0"); A("s_cbranch_scc1 L_dm"); stamp(13); A("L_dm:")
    A("s_barrier")
    A("L_fin:")
    if probe >= 0:
        stamp(14)
        A("s_waitcnt vmcnt(0)")
        stamp(15)
        A("s_waitcnt lgkmcnt(0)")
        A("v_readfirstlane_b32 s40, v1")
        if pwave >= 0:
            A(f"s_cmp_lg_u32 s40, {pwave}"); A("s_cbranch_scc1 L_end")
        if pwg >= 0:
            A(f"s_cmp_lg_u32 s2, {pwg}"); A("s_cbranch_scc1 L_end")
        A("s_sub_u32 s41, s66, s64"); A(f"s_mul_i32 s41, s41, {pmul}"); A("s_add_u32 s41, s41, 4000")
        if pxcc:
            A("s_getreg_b32 s42, hwreg(HW_REG_XCC_ID, 0, 4)"); A(f"s_and_b32 s42, s42, {pxcc}"); A("s_mul_i32 s42, s42, 1000"); A("s_add_u32 s41, s41, s42")
        A("L_spin:")
        A("s_memrealtime s[68:69]"); A("s_waitcnt lgkmcnt(0)")
        A("s_sub_u32 s42, s68, s64"); A("s_cmp_lt_u32 s42, s41"); A("s_cbranch_scc1 L_spin")
    if diag:
        stamp(14)
        A("s_waitcnt vmcnt(0)")
        stamp(15)
        A("s_waitcnt lgkmcnt(0)")
        A("L_dl:"); A("s_sleep 16"); A("s_memrealtime s[60:61]"); A("s_waitcnt lgkmcnt(0)"); A("s_sub_u32 s60, s60, s64"); A("s_cmp_lt_u32 s60, 2200"); A("s_cbranch_scc1 L_dl")
        A("s_mov_b64 exec, 1")
        A("v_readfirstlane_b32 s40, v1")
        A("s_lshl_b32 s41, s2, 3"); A("s_add_u32 s40, s40, s41"); A("s_lshl_b32 s40, s40, 8"); A("s_add_u32 s40, s40, 0x10000000")
        A("v_mov_b32 v2, s40")
        for k in range(16):
            A(f"v_mov_b32 v4, s{64+2*k}"); A(f"v_mov_b32 v5, s{65+2*k}")
            A(f"global_store_dwordx2 v2, v[4:5], {sWS} offset:{8*k}")
            A("s_nop 1")
    A("L_end:")
    A("s_endpgm")
    A('.section .rodata,"a"'); A(".p2align 6"); A(f".amdhsa_kernel {KNAME}")
    A("  .amdhsa_next_free_vgpr 256"); A("  .amdhsa_next_free_sgpr 102"); A("  .amdhsa_accum_offset 256")
    A("  .amdhsa_group_segment_fixed_size 0"); A("  .amdhsa_kernarg_size 96"); A("  .amdhsa_user_sgpr_count 2")
    A("  .amdhsa_user_sgpr_kernarg_segment_ptr 1"); A("  .amdhsa_system_sgpr_workgroup_id_x 1")
    A("  .amdhsa_float_denorm_mode_32 3")
    A(".end_amdhsa_kernel")
    lines = []
    for l in L: lines.extend(l.split("\n"))
    lines = hazard_pass(lines)
    return "\n".join(lines) + "\n"

if __name__ == "__main__":
    ap = argparse.ArgumentParser()
    ap.add_argument("out")
    ap.add_argument("--opt", nargs="*", default=[])
    a = ap.parse_args()
    kw = {}
    for o in a.opt:
        k, v = o.split("=")
        try: v = int(v)
        except ValueError: pass
        kw[k] = v
    open(a.out, "w").write(gen(**kw))
```

```python
import re

def vr(a, n=1):
    return f"v{a}" if n == 1 else f"v[{a}:{a+n-1}]"
def sr(a, n=1):
    return f"s{a}" if n == 1 else f"s[{a}:{a+n-1}]"

_reg_re = re.compile(r"^(-|\|)?(abs\()?([vsa])(?:(\d+)|\[(\d+):(\d+)\])\)?\|?$")
def parse_reg(tok):
    tok = tok.strip()
    if tok in ("vcc",): return [("s", "vcc")]
    if tok in ("exec",): return [("s", "exec")]
    if tok in ("m0",): return [("s", "m0")]
    if tok in ("vcc_lo", "vcc_hi"): return [("s", "vcc")]
    if tok in ("exec_lo", "exec_hi"): return [("s", "exec")]
    m = _reg_re.match(tok)
    if not m: return []
    k = m.group(3)
    if m.group(4) is not None:
        return [(k, int(m.group(4)))]
    return [(k, i) for i in range(int(m.group(5)), int(m.group(6)) + 1)]

TRANS = ("v_exp_f32", "v_log_f32", "v_rcp_f32", "v_rsq_f32", "v_sqrt_f32", "v_sin_f32", "v_cos_f32")

class Ins:
    def __init__(self, text):
        self.text = text
        t = text.split(";")[0].strip()
        self.is_label = t.endswith(":")
        self.is_dir = t.startswith(".")
        self.empty = (t == "")
        self.op = ""
        self.w = []; self.r = []
        if self.is_label or self.is_dir or self.empty: return
        parts = t.split(None, 1)
        self.op = op = parts[0]
        rest = parts[1] if len(parts) > 1 else ""
        ops = []; cur = ""; depth = 0
        for ch in rest:
            if ch in "[(": depth += 1
            if ch in "])": depth -= 1
            if ch == "," and depth == 0:
                ops.append(cur); cur = ""
            else: cur += ch
        ops.append(cur)
        if ops:
            last = ops[-1].strip().split()
            self.mods = " ".join(last[1:]) if last else ""
            ops[-1] = last[0] if last else ""
        ops = [o.strip() for o in ops]
        self.ops = ops
        R = [parse_reg(o) for o in ops]
        self.valu = op.startswith("v_") and not op.startswith("v_mfma")
        self.mfma = op.startswith("v_mfma")
        self.dpp = op.endswith("_dpp")
        self.perml = op.startswith("v_permlane")
        self.trans = any(op.startswith(x) for x in TRANS)
        self.vmem = op.startswith(("global_", "buffer_", "flat_"))
        self.ds = op.startswith("ds_")
        self.salu = op.startswith("s_")
        self.store = self.vmem and ("store" in op or "atomic" in op)
        self.lane = op.startswith(("v_readlane", "v_readfirstlane"))
        flat = lambda l: [x for y in l for x in y]
        if self.mfma:
            self.w = R[0]; self.a = R[1]; self.b = R[2]; self.c = R[3]; self.r = R[1] + R[2] + R[3]
        elif self.perml:
            self.w = R[0] + R[1]; self.r = R[0] + R[1]
        elif self.valu:
            self.w = R[0]; self.r = flat(R[1:])
            if op.startswith(("v_add_co", "v_addc_co", "v_sub_co", "v_subb_co")):
                self.w = R[0] + R[1]; self.r = flat(R[2:])
            if (self.dpp and not op.startswith("v_cmp")) or op.startswith(("v_fmac", "v_dot2c", "v_writelane")):
                self.r = self.r + R[0]
            if op.startswith("v_cndmask") and len(ops) == 3: self.r.append(("s", "vcc"))
            if op.startswith("v_cmpx"): self.w = self.w + [("s", "exec")]
        elif self.vmem and op.startswith(("buffer_wbl2", "buffer_inv")):
            pass
        elif self.vmem:
            if self.store and "atomic" in op and "sc0" in self.mods:
                self.w = R[0]; self.r = flat(R[1:]); self.data = R[2]
            elif self.store:
                self.r = flat(R)
                if op.startswith("global_"): self.data = R[1]
                else: self.data = R[0]
            elif "lds" in op or " lds" in (" " + self.mods):
                self.r = flat(R) + [("s", "m0")]
            else:
                self.w = R[0]; self.r = flat(R[1:])
                if "d16" in op: self.r = self.r + R[0]
        elif self.ds:
            if op.startswith(("ds_read", "ds_bpermute", "ds_permute", "ds_swizzle")) or "_rtn" in op:
                self.w = R[0]; self.r = flat(R[1:])
            else:
                self.r = flat(R)
        elif self.salu:
            if op.startswith(("s_cmp", "s_cbranch", "s_branch", "s_waitcnt", "s_nop", "s_barrier", "s_sleep", "s_setprio", "s_endpgm", "s_bitcmp")):
                self.r = flat(R)
            else:
                self.w = R[0] if R else []; self.r = flat(R[1:])
                if "saveexec" in op: self.w = self.w + [("s", "exec")]
    def states(self):
        if self.is_label or self.is_dir or self.empty: return 0
        if self.op == "s_nop": return int(self.ops[0], 0) + 1
        return 1

def mfma_passes(op):
    if "16x16x32" in op or "16x16x16" in op: return 4
    if "32x32x16" in op or "32x32x8" in op: return 8
    raise ValueError(op)

def need(prod, cons):
    n = 0
    pw = set(prod.w); cr = set(cons.r); cw = set(cons.w)
    pwv = {x for x in pw if x[0] in "va"}; pws = {x for x in pw if x[0] == "s"}
    if prod.valu:
        if pwv & cr:
            if cons.mfma: n = max(n, 2)
            if cons.dpp: n = max(n, 2)
            if cons.perml: n = max(n, 2)
            if cons.lane: n = max(n, 1)
            if prod.trans and cons.valu and not cons.trans: n = max(n, 1)
            if prod.trans and (cons.vmem or cons.ds): n = max(n, 1)
        if pws & cr:
            if cons.valu or cons.mfma: n = max(n, 2)
            if cons.lane: n = max(n, 4)
            if cons.vmem: n = max(n, 5)
        if ("s", "exec") in pw:
            if cons.dpp: n = max(n, 5)
            if cons.mfma or cons.perml or cons.lane: n = max(n, 4)
        if (("s", "vcc") in pw) and cons.op.startswith("s_cbranch_vcc"): n = max(n, 1)
    if prod.mfma:
        p = mfma_passes(prod.op)
        big = {4: 8, 8: 12}[p]
        if cons.mfma:
            if pw & (set(cons.a) | set(cons.b)): n = max(n, big)
            if pw & set(cons.c) and list(cons.c) != list(prod.w): n = max(n, big - 2)
            if pw & cw and not (pw & set(cons.c)): n = max(n, big - 2)
        elif cons.valu or cons.vmem or cons.ds:
            if pw & (cr | cw): n = max(n, big)
        if cons.valu and (set(prod.c) & cw): n = max(n, {4: 3, 8: 7}[p])
    if prod.salu and ("s", "m0") in pw and ("s", "m0") in cr and (cons.vmem or cons.ds): n = max(n, 1)
    if prod.salu and ("s", "m0") in pw and cons.op.startswith("s_movrel"): n = max(n, 1)
    if prod.salu and ("s", "exec") in pw and (cons.dpp or cons.perml): n = max(n, 1)
    if prod.vmem and prod.store and len(prod.data) >= 3 and (set(prod.data) & cw):
        n = max(n, 2 if cons.valu else 1)
    return n

def hazard_pass(lines, verbose=False):
    out = []; hist = []
    added = 0
    for t in lines:
        ins = Ins(t)
        if ins.is_label or ins.is_dir or ins.empty:
            out.append(t); continue
        dist = 0; req = 0
        for p in reversed(hist):
            nd = need(p, ins)
            if nd - dist > req: req = nd - dist
            dist += p.states()
            if dist >= 14: break
        if req > 0:
            nop = Ins(f"s_nop {req-1}")
            out.append(f"s_nop {req-1}"); hist.append(nop); added += req
        out.append(t); hist.append(ins)
        if ins.op in ("s_branch", "s_endpgm", "s_setpc_b64"): hist = []
    if verbose: print("hazard nops states added:", added)
    return out

class VM:
    def __init__(self, emit):
        self.q = []; self.emit = emit
    def issue(self, tag, store=False):
        self.q.append((tag, store))
    def wait(self, tag):
        idx = None
        for i, (t, s) in enumerate(self.q):
            if t == tag: idx = i
        if idx is None: return
        younger = sum(1 for (t, s) in self.q[idx+1:] if not s)
        self.emit(f"s_waitcnt vmcnt({min(younger, 63)})")
        if younger <= 63: self.q = self.q[idx+1:]
    def wait_all(self):
        self.emit("s_waitcnt vmcnt(0)"); self.q = []
```

```python
import sys, argparse
sys.path.insert(0, "gen")
from asmlib import *

KNAME = "parallel_sum__sliding_block_cached__swiglu_ffn__decode_kernel"
QP    = 0x000000
GP    = 0x040000
CLR   = 0x080000
EPOCH = 0x081000
ST    = 0x088000
IN1   = 0x090000
ZF    = 0x082000
ACC   = 0x100000
IN2   = 0x100000
L_PA, L_O, L_Q, L_M, L_MODE, L_CNT, L_X = 0, 4096, 12288, 13312, 13376, 13380, 4096
LDS_BYTES = 13440
LOG2E = 0x3fb8aa3b
SCALE = 0x3db504f3
EPS = 0x3727c5ac
SPIN = 1 << 22

HEADER = open("parallel_sum__sliding_block_cached__swiglu_ffn__decode.s.ref").read().split("; Override launch")[0]

def gen(diag=False, nt="nt", ntw="nt", nB0=3, nVf=12, swz="xorj", fast=1, pollsleep=0, prefetch=1, align=1,
        skip="", qkload=2, smload=2, pv0=19, pv1=27, walk=0, ldsync=1, h1early=1, tlb=0, in2touch=0, pubtouch=0, segsh=8, outtouch=1, remap=1, sched=1, pert1=0, pertall=0, qkint=0, smint=0, padT=0, padTo=0, cmap=1, nohello=0, pubsc1=0, outsc1=0, wbl2=0, pad2=0, cw=0, h2sleep=0, h2pre=0, pubdelay=0, condelay=0, pxcc=0, probe=-1, pwave=-1, pwg=-1, pmul=4):
    L = []
    A = L.append
    def stamp(k):
        if probe >= 0:
            if k == 0: A("s_memrealtime s[64:65]"); A("s_memrealtime s[66:67]")
            elif k == probe: A("s_memrealtime s[66:67]")
        if diag:
            A(f"s_memrealtime s[{64+2*k}:{65+2*k}]")
            if k == 1:
                for q in range(2, 16): A(f"s_mov_b64 s[{64+2*q}:{65+2*q}], 0")
    uid = [0]
    def lab(p):
        uid[0] += 1
        return f"L_{p}_{uid[0]}"
    DPPF = "row_mask:0xf bank_mask:0xf"
    sX, sK, sV, sWQ, sWO, sG, sU, sWD, sOUT, sDBG, sWS = (f"s[{a}:{a+1}]" for a in (8,10,12,14,16,20,22,24,26,28,30))
    W_, XX, J_, B_, S_ = "s3", "s4", "s5", "s6", "s7"
    sPITCH, sCB, sKH, sFB, sHB = "s32", "s33", "s34", "s35", "s36"
    sSELLO, sSELHI, sHI = "s37", "s38", "s39"
    sT0, sT1, sT2, sT3 = "s40", "s41", "s42", "s43"
    sSPIN = "s44"; sMODE = "s45"
    sPK = "s[46:47]"
    sSAVE = "s[48:49]"
    sTB = "s[50:51]"
    sRB = "s52"; sL2E = "s53"; sTAG = "s56"; sNOA = "s57"; JA = "s62"
    if remap:
        PERM = [None]*32
        for i, j in enumerate((3, 11, 19, 27)): PERM[j] = 28 + i
        for a, j in zip((6, 7, 16, 17, 18, 19), (24, 25, 26, 28, 29, 30)): PERM[j] = a
        rest = [a for a in range(32) if a not in PERM]
        for j in range(32):
            if PERM[j] is None: PERM[j] = rest.pop(0)
        heavy = [3, 7, 11, 15, 19, 23, 27]; norm = [b for b in range(28) if b not in heavy]
        BLK = []
        for x in range(8):
            row = [] if x == 0 else [heavy.pop(0)]
            while len(row) < (3 if x & 1 else 4): row.append(norm.pop(0))
            BLK.append(row + [0]*(4 - len(row)))
    else:
        PERM = list(range(32))
        BLK = [[min(27, ((7*x + 1) >> 1) + u) for u in range(4)] for x in range(8)]

    def unpack(lo, hi, src):
        A(f"v_lshlrev_b32 v{lo}, 16, v{src}")
        A(f"v_and_b32 v{hi}, {sHI}, v{src}")
    def rows_reduce(op, v, t):
        A(f"v_mov_b32 v{t}, v{v}")
        A(f"v_permlane16_swap_b32 v{v}, v{t}")
        A(f"{op} v{v}, v{v}, v{t}")
        A(f"v_mov_b32 v{t}, v{v}")
        A(f"v_permlane32_swap_b32 v{v}, v{t}")
        A(f"{op} v{v}, v{v}, v{t}")
    def max_tree_u32(dst, regs):
        regs = list(regs)
        A(f"v_max3_u32 v{dst}, v{regs[0]}, v{regs[1]}, v{regs[2]}")
        regs = regs[3:]
        while len(regs) >= 2:
            A(f"v_max3_u32 v{dst}, v{dst}, v{regs[0]}, v{regs[1]}"); regs = regs[2:]
        if regs: A(f"v_max_u32 v{dst}, v{dst}, v{regs[0]}")
    def poll(loads, regs, tmp, first_issued=False, tagged=False, sleep=None):
        lp, dn = lab("poll"), lab("pdone")
        def check():
            r = list(regs)
            if tagged:
                if len(r) == 1:
                    A(f"v_cmp_ne_u32 vcc, {sTAG}, v{r[0]}")
                else:
                    A(f"v_xor_b32 v{tmp}, {sTAG}, v{r[0]}")
                    for q in r[1:]: A(f"v_bitop3_b32 v{tmp}, v{q}, {sTAG}, v{tmp} bitop3:0xbe")
                    A(f"v_cmp_ne_u32 vcc, 0, v{tmp}")
            else:
                max_tree_u32(tmp, r)
                A(f"v_cmp_eq_u32 vcc, -1, v{tmp}")
        A(f"s_mov_b32 {sSPIN}, {SPIN}")
        if first_issued:
            chk = lab("pchk"); A(f"s_branch {chk}")
        A(f"{lp}:")
        for l in loads: A(l)
        A("s_waitcnt vmcnt(0)")
        if first_issued: A(f"{chk}:")
        check()
        A(f"s_cbranch_vccz {dn}")
        A("s_mov_b64 exec, vcc")
        if sleep is None: sleep = pollsleep
        if sleep: A(f"s_sleep {sleep}")
        A(f"s_sub_u32 {sSPIN}, {sSPIN}, 1")
        A(f"s_cbranch_scc0 {lp}")
        A(f"{dn}:")
        A("s_mov_b64 exec, -1")
    def mstore(instrs):
        if not fast:
            for i in instrs: A(i + " sc1")
            return
        sl, dn = lab("slow"), lab("sdone")
        A(f"s_cbranch_scc0 {sl}")
        for i in instrs: A(i)
        A(f"s_branch {dn}")
        A(f"{sl}:")
        for i in instrs: A(i + " sc1")
        A(f"{dn}:")
    def consts():
        A(f"s_mov_b32 {sHI}, 0xffff0000")
        A(f"s_mov_b32 {sSELLO}, 0x05040100"); A(f"s_mov_b32 {sSELHI}, 0x07060302")
        A(f"s_mov_b32 {sL2E}, {LOG2E:#x}")

    A(HEADER.rstrip())
    A(f"; @launch grid=(256,1,1) block=(512,1,1) lds={LDS_BYTES}")
    A('.amdgcn_target "amdgcn-amd-amdhsa--gfx950"')
    A(".text")
    if align:
        A(".p2align 12"); A(f".fill {0xD00//4}, 4, 0xbf810000")
    A(f".globl {KNAME}"); A(".p2align 8"); A(f".type {KNAME},@function"); A(f"{KNAME}:")
    stamp(0)
    A("s_cmp_ge_u32 s2, 256"); A("s_cbranch_scc1 L_end")
    A("s_load_dwordx16 s[8:23], s[0:1], 0")
    A("s_load_dwordx8 s[24:31], s[0:1], 64")
    A("v_lshrrev_b32 v1, 6, v0")
    A("v_and_b32 v0, 63, v0")
    A(f"v_readfirstlane_b32 {W_}, v1")
    A(f"s_and_b32 {XX}, s2, 7")
    A(f"s_lshr_b32 {J_}, s2, 3")
    A("v_and_b32 v2, 15, v0")
    A("v_lshrrev_b32 v3, 4, v0")
    A("v_bfe_u32 v4, v0, 2, 2")
    A("v_and_b32 v5, 3, v0")
    A(f"s_lshr_b32 {B_}, {J_}, 3"); A(f"s_and_b32 {S_}, {J_}, 7")
    A(f"s_cmp_ge_u32 {W_}, 4"); A("s_cbranch_scc1 L_stream")

    vm = VM(A)
    X, XA, T, U, AF, BF, D = 16, 32, 40, 72, 104, 112, 144
    pk = lambda r: r[0] | r[1] << 8 | r[2] << 16 | r[3] << 24
    A(f"s_lshr_b32 m0, {J_}, 2")
    for i in range(8): A(f"s_mov_b32 s{44+i}, {pk(PERM[4*i:4*i+4]):#x}")
    A(f"s_movrels_b32 {JA}, s44")
    A(f"s_mov_b32 m0, {XX}")
    for i in range(8): A(f"s_mov_b32 s{44+i}, {pk(BLK[i]):#x}")
    A(f"s_movrels_b32 {sFB}, s44")
    A(f"s_lshl_b32 {sT0}, {J_}, 3"); A(f"s_lshr_b32 {JA}, {JA}, {sT0}"); A(f"s_and_b32 {JA}, {JA}, 31")
    A(f"s_and_b32 {sKH}, {JA}, 1")
    A(f"s_lshr_b32 {sT0}, {JA}, 1")
    A(f"s_lshl_b32 {sT1}, {XX}, 3"); A(f"s_add_u32 {sT1}, {sT1}, {sT0}")
    A(f"s_lshl_b32 {sT2}, {JA}, 1"); A(f"s_and_b32 {sT2}, {sT2}, 24"); A(f"s_lshr_b32 {sT2}, {sFB}, {sT2}"); A(f"s_and_b32 {sT2}, {sT2}, 31")
    A(f"s_cmp_lt_u32 {JA}, 16")
    A(f"s_cselect_b32 {sCB}, {sT1}, {sT2}")
    A(f"s_movk_i32 {sT3}, 3584")
    A(f"s_cselect_b32 {sPITCH}, 8192, {sT3}")
    A(f"s_lshl_b32 {sT0}, {W_}, 10")
    A(f"v_lshl_add_u32 v6, v0, 4, {sT0}")
    A(f"s_lshl_b32 {sT0}, {sKH}, 2"); A(f"s_add_u32 {sT0}, {sT0}, {W_}"); A(f"s_lshl_b32 {sT0}, {sT0}, 6")
    A(f"v_lshl_add_u32 v7, v3, 4, {sT0}")
    A("v_lshlrev_b32 v8, 1, v7")
    A("v_lshl_add_u32 v8, v4, 10, v8")
    A(f"s_lshl_b32 {sT1}, {sCB}, 7")
    A(f"v_lshl_add_u32 v9, v2, 3, {sT1}")
    A(f"v_mad_u32_u24 v9, v7, {sPITCH}, v9")
    A(f"s_getreg_b32 {sHB}, hwreg(HW_REG_XCC_ID, 0, 4)")
    A(f"s_bitset1_b32 {sHB}, 7")
    A(f"s_lshl_b32 {sT2}, {XX}, 5"); A(f"s_add_u32 {sT3}, {sT2}, {J_}")
    A(f"v_mov_b32 v10, {sT3}"); A(f"v_mov_b32 v11, {sHB}")
    A("v_and_b32 v12, 7, v0")
    A(f"v_lshl_add_u32 v12, v12, 2, {sT2}")
    A(f"s_lshl_b32 {sNOA}, {JA}, 3"); A(f"s_or_b32 {sNOA}, {sNOA}, {XX}")
    A(f"s_and_b32 {sNOA}, {sNOA}, 0xe1")
    A(f"s_bitcmp1_b32 {JA}, 1")
    A("s_waitcnt lgkmcnt(0)")
    A(f"s_cselect_b64 {sTB}, {sU}, {sG}")
    A(f"s_cmp_lt_u32 {JA}, 16")
    A(f"s_cselect_b64 {sTB}, {sWQ}, {sTB}")
    if not nohello: A(f"global_store_byte v10, v11, {sDBG}")
    A(f"s_load_dword {sTAG}, {sWS}, {EPOCH:#x}")
    A(f"global_load_dwordx4 {vr(X,4)}, v6, {sX}"); vm.issue("x")
    A(f"s_cmp_eq_u32 {sNOA}, 0xe1"); A("s_cbranch_scc1 L_noA")
    for jj in range(16):
        A(f"global_load_dwordx2 {vr(T+2*jj,2)}, v9, {sTB} {ntw}"); vm.issue(("t", jj))
        if jj < 15: A(f"v_add_u32 v9, {sPITCH}, v9")
    stamp(1)
    consts()
    A(f"v_mov_b32 v15, {L_CNT}"); A("v_mov_b32 v13, 0")
    A("ds_write_b32 v15, v13")
    vm.wait("x")
    stamp(2)
    for i in range(4): unpack(U+2*i, U+2*i+1, X+i)
    def wave_sum(dst):
        A(f"v_pk_add_f32 {vr(XA,2)}, {vr(XA,2)}, {vr(XA+2,2)}")
        A(f"v_add_f32 v{dst}, v{XA}, v{XA+1}")
        A(f"v_add_f32_dpp v{dst}, v{dst}, v{dst} quad_perm:[1,0,3,2] {DPPF}")
        A(f"v_add_f32_dpp v{dst}, v{dst}, v{dst} quad_perm:[2,3,0,1] {DPPF}")
        A(f"v_add_f32_dpp v{dst}, v{dst}, v{dst} row_ror:4 {DPPF}")
        A(f"v_add_f32_dpp v{dst}, v{dst}, v{dst} row_ror:8 {DPPF}")
        rows_reduce("v_add_f32", dst, XA+4)
        A(f"v_mul_f32 v{dst}, 0x3b000000, v{dst}")
    A(f"v_pk_add_f32 {vr(XA,2)}, {vr(U,2)}, {vr(U+2,2)}")
    A(f"v_pk_add_f32 {vr(XA+2,2)}, {vr(U+4,2)}, {vr(U+6,2)}")
    wave_sum(10)
    for i in range(4):
        A(f"v_pk_add_f32 {vr(U+8+2*i,2)}, {vr(U+2*i,2)}, v[10:11] op_sel_hi:[1,0] neg_lo:[0,1] neg_hi:[0,1]")
    A(f"v_pk_mul_f32 {vr(XA,2)}, {vr(U+8,2)}, {vr(U+8,2)}")
    A(f"v_pk_mul_f32 {vr(XA+2,2)}, {vr(U+10,2)}, {vr(U+10,2)}")
    A(f"v_pk_fma_f32 {vr(XA,2)}, {vr(U+12,2)}, {vr(U+12,2)}, {vr(XA,2)}")
    A(f"v_pk_fma_f32 {vr(XA+2,2)}, {vr(U+14,2)}, {vr(U+14,2)}, {vr(XA+2,2)}")
    wave_sum(11)
    A("v_cvt_pk_bf16_f32 v13, v10, v11")
    unpack(10, 11, 13)
    A(f"v_add_f32 v11, {EPS:#x}, v11")
    for i in range(4):
        A(f"v_pk_add_f32 {vr(U+2*i,2)}, {vr(U+2*i,2)}, v[10:11] op_sel_hi:[1,0] neg_lo:[0,1] neg_hi:[0,1]")
    A("v_cvt_pk_bf16_f32 v11, v11, v11")
    A("v_lshlrev_b32 v11, 16, v11")
    A("v_sqrt_f32 v11, v11")
    for i in range(4): A(f"v_cvt_pk_bf16_f32 v{X+i}, v{U+2*i}, v{U+2*i+1}")
    A("v_cvt_pk_bf16_f32 v11, v11, v11")
    A("v_lshlrev_b32 v11, 16, v11")
    A("v_rcp_f32 v10, v11")
    for i in range(4): unpack(U+2*i, U+2*i+1, X+i)
    for i in range(4):
        A(f"v_pk_mul_f32 {vr(U+2*i,2)}, {vr(U+2*i,2)}, v[10:11] op_sel_hi:[1,0]")
    for i in range(4): A(f"v_cvt_pk_bf16_f32 v{X+i}, v{U+2*i}, v{U+2*i+1}")
    A(f"ds_write_b128 v6, {vr(X,4)} offset:{L_X}")
    A("s_waitcnt lgkmcnt(0)")
    stamp(3)
    A("s_barrier")
    A(f"global_load_dword v14, v12, {sDBG} sc1"); vm.issue("mode")
    for i in range(2): A(f"ds_read_b128 {vr(AF+4*i,4)}, v8 offset:{L_X+16*i}")
    A("s_waitcnt lgkmcnt(0)")
    for blk in range(2):
        vm.wait(("t", 8*blk+7))
        for e in range(4):
            for r in range(4):
                A(f"v_perm_b32 v{BF+16*blk+4*e+r}, v{T+2*(8*blk+2*r+1)+(e>>1)}, v{T+2*(8*blk+2*r)+(e>>1)}, {sSELHI if e&1 else sSELLO}")
        for e in range(4):
            c = "0" if blk == 0 else vr(D+4*e,4)
            A(f"v_mfma_f32_16x16x32_bf16 {vr(D+4*e,4)}, {vr(AF+4*blk,4)}, {vr(BF+16*blk+4*e,4)}, {c}")
    A(f"ds_write2_b32 v6, v{D}, v{D+4} offset0:0 offset1:1")
    A(f"ds_write2_b32 v6, v{D+8}, v{D+12} offset0:2 offset1:3")
    if ldsync:
        A("v_mov_b32 v13, 1")
        A("s_mov_b64 exec, 1")
        A("ds_add_u32 v15, v13")
        A("s_mov_b64 exec, -1")
    A("s_branch L_B0s")
    A("L_noA:")
    stamp(1)
    consts()
    A("s_waitcnt vmcnt(0)")
    A("s_barrier")
    A(f"global_load_dword v14, v12, {sDBG} sc1")
    A("L_B0s:")
    A("s_waitcnt lgkmcnt(0)")
    stamp(4)
    stamp(5)
    A(f"s_mul_i32 {sTAG}, {sTAG}, 0x0019660d"); A(f"s_add_u32 {sTAG}, {sTAG}, 0x3c6ef35f")
    A(f"s_mul_i32 {sT0}, {sHB}, 0x01010101")
    A(f"s_cmp_eq_u32 {W_}, 1"); A("s_cbranch_scc1 L_w1a")
    A(f"s_cmp_eq_u32 {W_}, 2"); A("s_cbranch_scc1 L_w2a")
    A("s_waitcnt vmcnt(0)")
    A(f"v_cmp_ne_u32 vcc, {sT0}, v14")
    A(f"s_mov_b32 {sMODE}, vcc_lo")
    if nohello: A(f"s_mov_b32 {sMODE}, 0")
    A(f"s_cmp_eq_u32 {W_}, 3"); A("s_cbranch_scc1 L_clear")
    A(f"s_cmp_eq_u32 {sNOA}, 0xe1"); A("s_cbranch_scc1 L_qduty")
    if ldsync:
        A("L_cnt:")
        A("ds_read_b32 v13, v15")
        A("s_waitcnt lgkmcnt(0)")
        A("v_cmp_ne_u32 vcc, 4, v13")
        A("s_cbranch_vccnz L_cnt")
    A("v_lshlrev_b32 v10, 4, v0")
    for w in range(4): A(f"ds_read_b128 {vr(X+4*w,4)}, v10 offset:{L_PA+1024*w}")
    A(f"s_lshl_b32 {sT0}, {XX}, 15"); A(f"s_lshl_b32 {sT1}, {sKH}, 12"); A(f"s_add_u32 {sT1}, {sT0}, {sT1}")
    A(f"s_and_b32 {sT2}, {sCB}, 7"); A(f"s_lshl_b32 {sT2}, {sT2}, 9"); A(f"s_add_u32 {sT1}, {sT1}, {sT2}")
    A(f"v_lshl_add_u32 v11, v2, 4, {sT1}")
    A("v_lshl_add_u32 v11, v3, 13, v11")
    A("v_add_u32 v12, 256, v11")
    A(f"s_cmp_lt_u32 {JA}, 16"); A("s_cbranch_scc1 L_pubq")
    A(f"s_bfe_u32 {sT1}, {JA}, 0x20002"); A(f"s_lshl_b32 {sT1}, {sT1}, 13"); A(f"s_add_u32 {sT0}, {sT0}, {sT1}")
    A(f"s_and_b32 {sT1}, {JA}, 3"); A(f"s_lshl_b32 {sT1}, {sT1}, 8"); A(f"s_add_u32 {sT0}, {sT0}, {sT1}"); A(f"s_add_u32 {sT0}, {sT0}, {GP}")
    A(f"v_lshl_add_u32 v11, v4, 11, {sT0}")
    A("v_lshl_add_u32 v11, v3, 6, v11")
    A("v_lshl_add_u32 v11, v5, 4, v11")
    A("v_add_u32 v12, 1024, v11")
    A("L_pubq:")
    for i in range(4): A(f"v_mov_b32 v{XA+2*i+1}, {sTAG}")
    A(f"s_cmp_eq_u32 {sMODE}, 0")
    A("s_waitcnt lgkmcnt(0)")
    for h in range(2):
        A(f"v_pk_add_f32 {vr(X+2*h,2)}, {vr(X+2*h,2)}, {vr(X+4+2*h,2)}")
        A(f"v_pk_add_f32 {vr(X+8+2*h,2)}, {vr(X+8+2*h,2)}, {vr(X+12+2*h,2)}")
    for i in range(4): A(f"v_add_f32 v{XA+2*i}, v{X+i}, v{X+8+i}")
    if "p" not in skip:
        if pubsc1:
            A(f"global_store_dwordx4 v11, {vr(XA,4)}, {sWS} sc1"); A(f"global_store_dwordx4 v12, {vr(XA+4,4)}, {sWS} sc1")
        else:
            mstore([f"global_store_dwordx4 v11, {vr(XA,4)}, {sWS}", f"global_store_dwordx4 v12, {vr(XA+4,4)}, {sWS}"])
    A("s_waitcnt vmcnt(0)")
    A("L_qduty:")
    stamp(6)
    A(f"s_lshl_b32 {sT0}, {XX}, 2"); A(f"s_add_u32 {sT0}, {sT0}, {B_}"); A(f"s_lshl_b32 {sT0}, {sT0}, 13"); A(f"s_add_u32 {sT0}, {sT0}, {QP+4096}")
    A(f"v_lshl_add_u32 v10, v0, 4, {sT0}")
    if "q" not in skip:
        poll([f"global_load_dwordx4 {vr(U+4*i,4)}, v10, {sWS} offset:{1024*i-4096} sc1" for i in range(8)], range(U+1, U+32, 2), 11, tagged=True)
    for i in range(8): A(f"v_add_f32 v{U+2*i}, v{U+2*i}, v{U+16+2*i}")
    for h in range(4): A(f"v_cvt_pk_bf16_f32 v{X+h}, v{U+4*h}, v{U+4*h+2}")
    A("v_and_b32 v10, 32, v0"); A("v_and_b32 v11, 1, v3")
    A("v_add_u32 v10, v10, v11")
    A("v_lshl_add_u32 v10, v2, 1, v10")
    A("v_lshlrev_b32 v10, 2, v10")
    A(f"ds_write2st64_b32 v10, v{X}, v{X+1} offset0:{L_Q//256} offset1:{L_Q//256+1}")
    A(f"ds_write2st64_b32 v10, v{X+2}, v{X+3} offset0:{L_Q//256+2} offset1:{L_Q//256+3}")
    A("s_branch L_B1s")
    A("L_w1a:")
    if prefetch:
        A(f"s_cmp_lg_u32 {J_}, 31"); A("s_cbranch_scc1 L_B1s")
        A(f"s_getpc_b64 {sSAVE}")
        A("L_pc:")
        A("v_lshlrev_b32 v10, 7, v0")
        A("v_add_u32 v11, 0x2000, v10")
        A("v_min_u32 v10, L_end-L_pc, v10")
        A("v_min_u32 v11, L_end-L_pc, v11")
        A(f"global_load_dword v250, v10, {sSAVE}")
        A(f"global_load_dword v251, v11, {sSAVE}")
    A("s_branch L_B1s")
    A("L_w2a:")
    A(f"s_cmp_lg_u32 {J_}, 0"); A("s_cbranch_scc1 " + ("L_pad" if padT else "L_B1s"))
    for i in range(4): A(f"v_mov_b32 v{X+i}, 0")
    A(f"s_lshl_b32 {sT0}, {XX}, {5+segsh}"); A(f"s_add_u32 {sT0}, {sT0}, {ACC}")
    A("v_lshrrev_b32 v10, 2, v0")
    A(f"v_lshl_add_u32 v10, v10, {segsh}, {sT0}")
    A("v_lshl_add_u32 v10, v5, 4, v10")
    A(f"v_add_u32 v11, {16 << segsh}, v10")
    A(f"global_store_dwordx4 v10, {vr(X,4)}, {sWS} sc1")
    A(f"global_store_dwordx4 v11, {vr(X,4)}, {sWS} sc1")
    if outtouch:
        A(f"s_lshl_b32 {sT0}, {XX}, 7")
        A(f"v_lshl_add_u32 v12, v5, 10, {sT0}")
        A(f"global_load_dword v248, v12, {sOUT}")
    A(f"s_lshl_b32 {sT0}, {XX}, 7"); A(f"s_add_u32 {sT0}, {sT0}, {ZF}")
    A(f"v_lshl_add_u32 v12, v2, 2, {sT0}"); A(f"v_mov_b32 v13, {sTAG}")
    A("s_waitcnt vmcnt(0)")
    A("s_mov_b64 exec, 0xffff")
    A(f"global_store_dword v12, v13, {sWS} sc1")
    A("s_mov_b64 exec, -1")
    if not padT: A("s_branch L_B1s")
    if padT:
        A("L_pad:")
        A(f"s_getpc_b64 {sSAVE}")
        A("L_pc2:")
        A(f"s_lshl_b32 {sT0}, s2, 2"); A(f"s_add_u32 {sT0}, {sT0}, L_tab-L_pc2"); A("s_add_u32 s48, s48, s40"); A("s_addc_u32 s49, s49, 0")
        A(f"s_load_dword {sT1}, {sSAVE}, 0")
        A("v_lshlrev_b32 v10, 6, v0")
        A("s_waitcnt lgkmcnt(0)")
        A("L_padl:")
        A(f"s_sub_u32 {sT1}, {sT1}, 1"); A("s_cbranch_scc1 L_B1s")
        A(f"global_load_dword v249, v10, {sX} sc1")
        A("s_branch L_padl")
    A("L_clear:")
    A(f"v_mov_b32 v13, {sMODE}"); A(f"v_mov_b32 v15, {L_MODE}")
    A("ds_write_b32 v15, v13")
    for i in range(4): A(f"v_mov_b32 v{X+i}, -1")
    A(f"s_lshl_b32 {sT0}, {XX}, 15"); A(f"s_lshl_b32 {sT1}, {J_}, 6"); A(f"s_add_u32 {sT0}, {sT0}, {sT1}"); A(f"s_add_u32 {sT0}, {sT0}, {IN1}")
    A("v_lshrrev_b32 v10, 2, v0")
    A(f"v_lshl_add_u32 v10, v10, 11, {sT0}")
    A("v_lshl_add_u32 v10, v5, 4, v10")
    A(f"s_lshl_b32 {sT0}, {XX}, 12"); A(f"s_lshl_b32 {sT1}, {J_}, 5"); A(f"s_add_u32 {sT0}, {sT0}, {sT1}"); A(f"s_add_u32 {sT0}, {sT0}, {ST}")
    A("v_bfe_u32 v11, v0, 3, 2"); A("v_and_b32 v12, 7, v0")
    A(f"v_lshl_add_u32 v11, v11, 10, {sT0}")
    A("v_lshl_add_u32 v11, v12, 2, v11")
    A(f"s_lshl_b32 {sT1}, {XX}, 5"); A(f"s_add_u32 {sT1}, {sT1}, {J_}"); A(f"s_lshl_b32 {sT1}, {sT1}, 2"); A(f"s_add_u32 {sT1}, {sT1}, {CLR}")
    A(f"v_mov_b32 v12, {sT1}"); A(f"v_mov_b32 v13, {sTAG}")
    A(f"s_cmp_eq_u32 {sMODE}, 0")
    if "c" not in skip:
        mstore([f"global_store_dwordx4 v10, {vr(X,4)}, {sWS}", f"global_store_dword v11, v{X}, {sWS}"])
    A("s_waitcnt vmcnt(0)")
    A("s_mov_b64 exec, 1")
    mstore([f"global_store_dword v12, v13, {sWS}"])
    A("s_mov_b64 exec, -1")
    A("L_B1s:")
    A("s_waitcnt lgkmcnt(0)")
    stamp(7)
    A("s_barrier")
    AD, AO, AS, AH1, AH2, AOUT, AIN2, ALW, XV = 160, 161, 162, 163, 164, 165, 166, 167, 168
    STT, WD, WO, HF, WT, BD, BO, DH, OA, DO = 24, 28, 36, 52, 56, 64, 72, 88, 104, 112
    Y = 144
    A(f"s_lshl_b32 {sRB}, {XX}, 2"); A(f"s_add_u32 {sRB}, {sRB}, {B_}")
    A(f"s_lshl_b32 {sT3}, {sRB}, 2"); A(f"s_add_u32 {sT3}, {sT3}, {W_}"); A(f"s_lshl_b32 {sT3}, {sT3}, 11")
    A(f"s_lshl_b32 {sT0}, {XX}, 7"); A(f"s_add_u32 {sT0}, {sT0}, {CLR}")
    A(f"v_lshl_add_u32 v13, v0, 2, {sT0}")
    A(f"s_lshl_b32 {sT0}, {S_}, 7"); A(f"s_add_u32 {sT0}, {sT0}, {ZF}")
    A("s_mov_b32 exec_lo, 0")
    A(f"v_mov_b32 v13, {sT0}")
    A("s_mov_b32 exec_lo, -1")
    cl = [f"global_load_dword v{Y+8}, v13, {sWS} sc1"]
    A(f"s_add_u32 {sT0}, {sT3}, {GP}")
    A(f"v_lshl_add_u32 v10, v5, 8, {sT0}")
    A("v_lshl_add_u32 v10, v4, 6, v10")
    A("v_lshl_add_u32 v10, v3, 4, v10")
    hl = [f"global_load_dwordx4 {vr(Y+4*i,4)}, v10, {sWS} offset:{1024*i} sc1" for i in range(2)]
    A(f"v_mov_b32 v{HF}, 0"); A(f"v_mov_b32 v{HF+1}, 0")
    A(f"s_and_b32 {sNOA}, s2, 0xc1")
    A(f"s_cmp_eq_u32 {sNOA}, 0xc1"); A("s_cbranch_scc1 L_noh")
    if "h" not in skip:
        poll(cl + hl, [Y+8, Y+1, Y+3, Y+5, Y+7], 11, tagged=True)
    for i in range(4): A(f"v_add_f32_dpp v{X+i}, v{Y+2*i}, v{Y+2*i} quad_perm:[1,0,3,2] {DPPF}")
    for i in range(2): A(f"v_cvt_pk_bf16_f32 v{X+4+i}, v{X+2*i}, v{X+2*i+1}")
    for i in range(2): unpack(X+2*i, X+2*i+1, X+4+i)
    for i in range(4): A(f"v_mul_f32 v{X+4+i}, {sL2E}, v{X+i}")
    for i in range(4): A(f"v_exp_f32 v{X+4+i}, -v{X+4+i}")
    for i in range(4): A(f"v_add_f32 v{X+4+i}, 1.0, v{X+4+i}")
    for i in range(4): A(f"v_rcp_f32 v{X+4+i}, v{X+4+i}")
    for i in range(4): A(f"v_mul_f32 v{X+4+i}, v{X+i}, v{X+4+i}")
    for i in range(2): A(f"v_cvt_pk_bf16_f32 v{Y+i}, v{X+4+2*i}, v{X+5+2*i}")
    for i in range(2): unpack(X+4+2*i, X+5+2*i, Y+i)
    for i in range(4): A(f"v_mul_f32_dpp v{X+4+i}, v{X+i}, v{X+4+i} quad_perm:[2,3,0,1] {DPPF}")
    A("v_cmp_eq_u32 vcc, 0, v5")
    for i in range(2): A(f"v_cvt_pk_bf16_f32 v{HF+i}, v{X+4+2*i}, v{X+5+2*i}")
    for i in range(2): A(f"v_cndmask_b32 v{HF+i}, 0, v{HF+i}, vcc")
    A("s_branch L_hdone")
    A("L_noh:")
    if "h" not in skip:
        poll(cl, [Y+8], 11, tagged=True)
    A("L_hdone:")
    A(f"s_lshl_b32 {sT1}, {S_}, 7")
    A(f"v_lshl_add_u32 v10, v2, 3, {sT1}")
    A(f"s_lshl_b32 {sT2}, {B_}, 3"); A(f"s_lshr_b32 {sT2}, {sFB}, {sT2}"); A(f"s_and_b32 {sT2}, {sT2}, 31"); A(f"s_lshl_b32 {sT2}, {sT2}, 2"); A(f"s_add_u32 {sT2}, {sT2}, {W_}"); A(f"s_lshl_b32 {sT2}, {sT2}, 14")
    A(f"v_lshl_add_u32 v11, v3, 12, {sT2}")
    A(f"v_add_u32 v{AD}, v11, v10")
    A(f"s_lshl_b32 {sT2}, {sRB}, 7")
    A(f"s_lshl_b32 {sT0}, {W_}, 1"); A(f"s_add_u32 {sT2}, {sT2}, {sT0}")
    A("v_and_b32 v11, 1, v3"); A("v_lshrrev_b32 v12, 1, v3")
    A("v_lshl_add_u32 v11, v11, 6, v12")
    A(f"v_add_u32 v11, {sT2}, v11")
    A(f"v_lshl_add_u32 v{AO}, v11, 10, v10")
    A(f"s_lshl_b32 {sT2}, {sRB}, 10"); A(f"s_add_u32 {sT2}, {sT2}, {ST}")
    A(f"v_lshl_add_u32 v{AS}, v0, 4, {sT2}")
    A(f"s_add_u32 {sT2}, {sT3}, {IN1}")
    A(f"v_lshl_add_u32 v11, v4, 9, {sT2}")
    A("v_lshl_add_u32 v11, v5, 6, v11")
    A(f"v_lshl_add_u32 v{AH1}, v3, 4, v11")
    A(f"s_lshl_b32 {sT2}, {S_}, 2"); A(f"s_add_u32 {sT2}, {sT2}, {W_}"); A(f"s_lshl_b32 {sT2}, {sT2}, {3+segsh}"); A(f"s_add_u32 {sT2}, {sT2}, {ACC}")
    A(f"v_lshl_add_u32 v11, v3, {segsh}, {sT2}")
    A(f"v_lshl_add_u32 v{AH2}, v2, 2, v11")
    A(f"s_lshl_b32 {sT1}, {W_}, 10")
    A(f"v_lshl_add_u32 v{ALW}, v0, 4, {sT1}")
    A("v_lshrrev_b32 v11, 1, v0")
    A(f"s_lshl_b32 {sT0}, {W_}, 8")
    A(f"v_lshl_add_u32 v{AIN2}, v11, 2, {sT0}")
    A(f"s_lshl_b32 {sT0}, {S_}, 7"); A(f"s_add_u32 {sT0}, {sT0}, {sT1}")
    A(f"v_lshl_add_u32 v{AOUT}, v11, 1, {sT0}")
    A(f"global_load_ushort v{XV}, v{AOUT}, {sX}")
    A(f"global_load_ushort v{XV+1}, v{AOUT}, {sX} offset:64")
    A("s_mov_b32 s54, 0xaaaaaaaa"); A("s_mov_b32 s55, 0xaaaaaaaa")
    for r in range(8): A(f"v_mov_b32 v{WD+r}, 0")
    A(f"s_movk_i32 {sT0}, 0x2000")
    A(f"s_cmp_eq_u32 {sNOA}, 0xc1")
    stamp(8)
    A("s_barrier")
    vm = VM(A)
    stl = f"global_load_dwordx4 {vr(STT,4)}, v{AS}, {sWS} sc1"
    h1l = [f"global_load_dwordx4 {vr(OA+4*sh,4)}, v{AH1}, {sWS} offset:{256*sh} sc1" for sh in range(2)]
    A(stl); vm.issue("st")
    A("s_cbranch_scc1 L_nowd")
    for jj in range(4):
        A(f"global_load_dwordx2 {vr(WD+2*jj,2)}, v{AD}, {sWD} offset:{1024*jj} {ntw}")
    A("L_nowd:")
    for jj in range(8):
        A(f"global_load_dwordx2 {vr(WO+2*jj,2)}, v{AO}, {sWO} {ntw}"); vm.issue(("wo", jj))
        if jj < 7: A(f"v_add_u32 v{AO}, {sT0}, v{AO}")
    stamp(9)
    A("s_barrier")
    vm.wait("st")
    poll([stl], range(STT, STT+4), 11, first_issued=True)
    m0, l0, m1, l1 = STT, STT+1, STT+2, STT+3
    A(f"v_max_f32 v10, v{m0}, v{m1}")
    def wdperm(e):
        for r in range(2):
            A(f"v_perm_b32 v{BD+2*e+r}, v{WD+2*(2*r+1)+(e>>1)}, v{WD+2*(2*r)+(e>>1)}, {sSELHI if e&1 else sSELLO}")
    wdperm(0)
    A(f"v_max_f32_dpp v10, v10, v10 quad_perm:[1,0,3,2] {DPPF}")
    wdperm(1)
    A(f"v_max_f32_dpp v11, v10, v10 quad_perm:[2,3,0,1] {DPPF}")
    wdperm(2)
    A(f"v_max_f32_dpp v11, v11, v11 row_ror:4 {DPPF}")
    wdperm(3)
    A(f"v_max_f32_dpp v11, v11, v11 row_ror:8 {DPPF}")
    A(f"v_sub_f32 v{m0}, v{m0}, v11"); A(f"v_sub_f32 v{m1}, v{m1}, v11"); A("v_sub_f32 v10, v10, v11")
    A(f"v_mul_f32 v{m0}, {sL2E}, v{m0}"); A(f"v_mul_f32 v{m1}, {sL2E}, v{m1}"); A(f"v_mul_f32 v10, {sL2E}, v10")
    A(f"v_exp_f32 v{m0}, v{m0}"); A(f"v_exp_f32 v{m1}, v{m1}"); A("v_exp_f32 v10, v10")
    A(f"v_mul_f32 v12, v{m0}, v{l0}")
    A(f"v_fmac_f32 v12, v{m1}, v{l1}")
    def dhm(e): A(f"v_mfma_f32_16x16x16_bf16 {vr(DH+4*e,4)}, {vr(HF,2)}, {vr(BD+2*e,2)}, 0")
    dhm(0)
    A(f"v_add_f32_dpp v12, v12, v12 quad_perm:[1,0,3,2] {DPPF}")
    dhm(1)
    A(f"v_add_f32_dpp v12, v12, v12 quad_perm:[2,3,0,1] {DPPF}")
    dhm(2)
    A(f"v_add_f32_dpp v12, v12, v12 row_ror:4 {DPPF}")
    dhm(3)
    A(f"v_add_f32_dpp v12, v12, v12 row_ror:8 {DPPF}")
    A("v_rcp_f32 v12, v12")
    A("v_mul_f32 v10, v10, v12")
    for s in range(8): A(f"v_mov_b32_dpp v{WT+s}, v10 row_newbcast:{2*s} {DPPF}")
    stamp(10)
    if h1early:
        if h1early == 1: vm.wait(("wo", 3))
        for l in h1l: A(l); vm.issue("h1")
        vm.wait(("wo", 7))
    else:
        vm.wait(("wo", 7))
        for l in h1l: A(l)
    for e in range(4):
        for r in range(4):
            A(f"v_perm_b32 v{BO+4*e+r}, v{WO+2*(2*r+1)+(e>>1)}, v{WO+2*(2*r)+(e>>1)}, {sSELHI if e&1 else sSELLO}")
    stamp(11)
    vm.wait_all()
    poll(h1l, range(OA, OA+8), 11, first_issued=True)
    stamp(12)
    def om(sh, e): A(f"v_mfma_f32_16x16x32_bf16 {vr(DO+16*sh+4*e,4)}, {vr(OA+4*sh,4)}, {vr(BO+4*e,4)}, 0")
    def of(sh, e, hh): A(f"v_pk_fma_f32 {vr(DH+4*e,2)}, {vr(DO+16*sh+4*e+2*hh,2)}, {vr(WT+4*sh+2*hh,2)}, {vr(DH+4*e,2)}")
    if sched:
        for e in range(4): om(0, e)
        for e in range(4):
            om(1, e); of(0, e, 0); of(0, e, 1)
        for e in range(4):
            of(1, e, 0); of(1, e, 1)
            if e: A(f"v_add_f32 v{STT+e-1}, v{DH+4*(e-1)}, v{DH+4*(e-1)+1}")
        A(f"v_add_f32 v{STT+3}, v{DH+12}, v{DH+13}")
    else:
        for sh in range(2):
            for e in range(4): om(sh, e)
        for sh in range(2):
            for hh in range(2):
                for e in range(4): of(sh, e, hh)
        for e in range(4): A(f"v_add_f32 v{STT+e}, v{DH+4*e}, v{DH+4*e+1}")
    A(f"ds_write_b128 v{ALW}, {vr(STT,4)} offset:{L_PA}")
    A("s_waitcnt lgkmcnt(0)")
    A("s_barrier")
    A(f"v_add_u32 v10, 128, v{AIN2}")
    A(f"ds_read2st64_b32 {vr(DO,2)}, v{AIN2} offset0:0 offset1:4")
    A(f"ds_read2st64_b32 {vr(DO+2,2)}, v{AIN2} offset0:8 offset1:12")
    A(f"ds_read2st64_b32 {vr(DO+4,2)}, v10 offset0:0 offset1:4")
    A(f"ds_read2st64_b32 {vr(DO+6,2)}, v10 offset0:8 offset1:12")
    A(f"v_lshlrev_b32 v{XV}, 16, v{XV}"); A(f"v_lshlrev_b32 v{XV+1}, 16, v{XV+1}")
    A("s_waitcnt lgkmcnt(0)" if (diag or probe >= 0) else "s_waitcnt lgkmcnt(2)")
    A(f"v_pk_add_f32 {vr(DO,2)}, {vr(DO,2)}, {vr(DO+2,2)}")
    A(f"v_add_f32 v{STT}, v{DO}, v{DO+1}")
    A(f"v_cndmask_b32 v{STT}, v{STT}, 1.0, s[54:55]")
    A(f"global_atomic_add_f32 v{STT+2}, v{AH2}, v{STT}, {sWS} sc0 sc1")
    A("s_waitcnt lgkmcnt(0)")
    A(f"v_pk_add_f32 {vr(DO+4,2)}, {vr(DO+4,2)}, {vr(DO+6,2)}")
    A(f"v_add_f32 v{STT+1}, v{DO+4}, v{DO+5}")
    A(f"v_cndmask_b32 v{STT+1}, v{STT+1}, 1.0, s[54:55]")
    A(f"global_atomic_add_f32 v{STT+3}, v{AH2}, v{STT+1}, {sWS} offset:{4 << segsh} sc0 sc1")
    stamp(13)
    A(f"v_pk_add_f32 {vr(XV,2)}, {vr(XV,2)}, {vr(STT,2)}")
    import struct as _st
    f2u = lambda f: _st.unpack("<I", _st.pack("<f", f))[0]
    if pertall:
        A(f"v_add_f32 v{XV}, {f2u(pertall/1000):#x}, v{XV}"); A(f"v_add_f32 v{XV+1}, {f2u(pertall/1000):#x}, v{XV+1}")
    if pert1:
        A(f"v_cmp_eq_u32 vcc, 0, v{AOUT}"); A(f"v_mov_b32 v10, {f2u(pert1/1000):#x}"); A("v_cndmask_b32 v10, 0, v10, vcc"); A(f"v_add_f32 v{XV}, v10, v{XV}")
    for t in range(2):
        A(f"s_waitcnt vmcnt({1-t})")
        if t == 1: stamp(5)
        A(f"v_cmp_eq_f32 vcc, 0x41f80000, v{STT+2+t}")
        A(f"v_add_f32 v{XV+t}, v{XV+t}, v{STT+2+t}")
        A("s_and_b64 vcc, vcc, s[54:55]")
        A(f"v_cvt_pk_bf16_f32 v{XV+t}, v{XV+t}, v{XV+t}")
        A("s_lshr_b64 s[58:59], vcc, 1" if t == 0 else "s_lshr_b64 exec, vcc, 1")
    ofl = " sc1" if outsc1 else ""
    A("s_cbranch_execz L_no1")
    A(f"global_store_short v{AOUT}, v{XV+1}, {sOUT} offset:64" + ofl)
    A("L_no1:")
    A("s_mov_b64 exec, s[58:59]")
    A("s_cbranch_execz L_fin")
    A(f"global_store_short v{AOUT}, v{XV}, {sOUT}" + ofl)
    A(f"s_or_b32 {sT0}, {S_}, {W_}"); A("s_cbranch_scc1 L_fin")
    A("s_bitcmp1_b32 s58, 0"); A("s_cbranch_scc0 L_fin")
    A("s_mov_b64 exec, 0xffffffff")
    A(f"s_mov_b32 {sT0}, {EPOCH}"); A(f"v_lshl_add_u32 v10, v0, 2, {sT0}"); A(f"v_mov_b32 v11, {sTAG}")
    A(f"global_store_dword v10, v11, {sWS}")
    A("s_branch L_fin")

    A("L_stream:")
    vm = VM(A)
    KR, VF, S, Q, QD, O, P, TM = 16, 144, 192, 200, 204, 236, 244, 248
    def kreg(i): return KR + 4*i
    def vreg(i): return VF + 4*i if i < nVf else KR + 4*(i - nVf)
    AT = [KR + 4*(32 - nVf), KR + 4*(32 - nVf) + 16]
    assert nVf >= 8 and nVf <= 12
    A(f"s_sub_u32 {W_}, {W_}, 4")
    A(f"s_lshl_b32 {sT0}, {B_}, 3"); A(f"s_add_u32 {sT0}, {sT0}, {XX}"); A(f"s_lshl_b32 {sT0}, {sT0}, 22")
    A(f"s_lshl_b32 {sT1}, {S_}, 17"); A(f"s_add_u32 {sT0}, {sT0}, {sT1}"); A(f"s_add_u32 {sT0}, {sT0}, {12288*256}")
    A(f"s_lshl_b32 {sT1}, {W_}, 10")
    if swz == "xorj":
        A(f"s_lshl_b32 {sT2}, {J_}, 12"); A(f"s_add_u32 {sT1}, {sT1}, {sT2}")
    elif swz == "xor7":
        A(f"s_add_u32 {sT2}, {J_}, {XX}"); A(f"s_and_b32 {sT2}, {sT2}, 7"); A(f"s_lshl_b32 {sT2}, {sT2}, 12"); A(f"s_add_u32 {sT1}, {sT1}, {sT2}")
    A(f"v_lshl_add_u32 v6, v0, 4, {sT1}")
    A(f"v_lshl_add_u32 v7, v5, 4, {sT1}")
    A("v_lshl_add_u32 v7, v4, 8, v7")
    A("v_lshl_add_u32 v7, v3, 6, v7")
    A("s_waitcnt lgkmcnt(0)")
    A(f"s_add_u32 s10, s10, {sT0}"); A("s_addc_u32 s11, s11, 0")
    A(f"s_add_u32 s12, s12, {sT0}"); A("s_addc_u32 s13, s13, 0")
    stamp(1)
    if tlb:
        A("s_mov_b64 exec, 1")
        A(f"s_cmp_lg_u32 {W_}, 0"); A("s_cbranch_scc1 L_notlb")
        A(f"s_lshl_b32 {sT0}, {XX}, 19"); A(f"v_mov_b32 v8, {sT0}")
        A(f"s_mul_i32 {sT0}, {XX}, {224*1024}"); A(f"v_mov_b32 v9, {sT0}")
        A(f"v_mov_b32 v10, {IN2}")
        A(f"global_load_dword v252, v6, {sV} {nt}")
        A(f"global_load_dword v253, v8, {sWO} {nt}")
        A(f"global_load_dword v254, v9, {sWD} {nt}")
        A(f"global_load_dword v255, v10, {sWS} {nt}")
        A("L_notlb:")
        A("s_mov_b64 exec, -1")
    nld = [0]
    def load(which, i):
        t = 8 + (nld[0] & 1); nld[0] += 1
        src, base, r = (7, sK, kreg(i)) if which == "K" else (6, sV, vreg(i))
        if i == 0: t = src
        else: A(f"v_xor_b32 v{t}, {4096*i:#x}, v{src}")
        A(f"global_load_dwordx4 {vr(r,4)}, v{t}, {base} {nt}"); vm.issue((which, i))
    for i in range(nB0): load("K", i)
    stamp(4)
    A("s_barrier")
    stamp(5)
    for i in range(nB0, 32): load("K", i)
    for i in range(nVf): load("V", i)
    consts()
    A("v_lshlrev_b32 v10, 8, v5")
    A("v_lshl_add_u32 v10, v3, 6, v10")
    A("v_lshl_add_u32 v10, v4, 4, v10")
    A(f"v_mov_b32 v11, {L_MODE}")
    stamp(6)
    A("s_barrier")
    stamp(7)
    A(f"ds_read_b128 {vr(Q,4)}, v10 offset:{L_Q}")
    A("ds_read_b32 v11, v11")
    A("s_waitcnt lgkmcnt(0)")
    A(f"v_readfirstlane_b32 {sMODE}, v11")
    def extract(i):
        d = QD + 4*(i % 8); s = S + (i & 1) + 2*(i >> 3); t = (i >> 1) & 3
        ops = []; first = True
        for v in range(4):
            if v == t: continue
            n = 4*((t - v) % 4)
            src1 = d + t if first else s
            ops.append(f"v_add_f32_dpp v{s}, v{d+v}, v{src1} row_ror:{n} row_mask:0xf bank_mask:{1<<t:#x}")
            first = False
        return ops
    def qk(i):
        vm.wait(("K", i))
        A(f"v_mfma_f32_16x16x32_bf16 {vr(QD+4*(i%8),4)}, {vr(kreg(i),4)}, {vr(Q,4)}, 0")
    nv = nVf
    if "k" not in skip:
      for i in range(4): qk(i)
      for i in range(0, 32, 2):
        a, b = extract(i), extract(i+1)
        A(a[0]); A(b[0])
        if i + 4 < 32: qk(i+4)
        A(a[1]); A(b[1])
        if i + 5 < 32: qk(i+5)
        A(a[2]); A(b[2])
        if qkint and (i // 2 + 1) % qkint == 0 and i < 30: load("V", nv); nv += 1
    stamp(2)
    for _ in range(qkload): load("V", nv); nv += 1
    stamp(3)
    A(f"s_mov_b32 s46, {SCALE:#x}"); A(f"s_mov_b32 s47, {SCALE:#x}")
    for i in range(4): A(f"v_cvt_pk_bf16_f32 v{P+i}, v{S+2*i}, v{S+2*i+1}")
    for i in range(4): unpack(S+2*i, S+2*i+1, P+i)
    for i in range(4): A(f"v_pk_mul_f32 {vr(S+2*i,2)}, {vr(S+2*i,2)}, {sPK}")
    for i in range(4): A(f"v_cvt_pk_bf16_f32 v{P+i}, v{S+2*i}, v{S+2*i+1}")
    for i in range(4): unpack(S+2*i, S+2*i+1, P+i)
    M_, Lr = TM, TM+1
    A(f"v_max3_f32 v{M_}, v{S}, v{S+1}, v{S+2}")
    A(f"v_max3_f32 v{TM+2}, v{S+3}, v{S+4}, v{S+5}")
    A(f"v_max3_f32 v{M_}, v{M_}, v{S+6}, v{S+7}")
    A(f"v_max_f32 v{M_}, v{M_}, v{TM+2}")
    A(f"v_max_f32_dpp v{M_}, v{M_}, v{M_} row_ror:4 {DPPF}")
    A(f"v_max_f32_dpp v{M_}, v{M_}, v{M_} row_ror:8 {DPPF}")
    rows_reduce("v_max_f32", M_, TM+2)
    for _ in range(smint): load("V", nv); nv += 1
    A(f"s_mov_b32 s46, {LOG2E:#x}"); A(f"s_mov_b32 s47, {LOG2E:#x}")
    for i in range(4):
        A(f"v_pk_add_f32 {vr(S+2*i,2)}, {vr(S+2*i,2)}, {vr(M_,2)} op_sel_hi:[1,0] neg_lo:[0,1] neg_hi:[0,1]")
    for i in range(4): A(f"v_pk_mul_f32 {vr(S+2*i,2)}, {vr(S+2*i,2)}, {sPK}")
    for i in range(8): A(f"v_exp_f32 v{S+i}, v{S+i}")
    for i in range(4): A(f"v_cvt_pk_bf16_f32 v{P+i}, v{S+2*i}, v{S+2*i+1}")
    A(f"v_pk_add_f32 {vr(S,2)}, {vr(S,2)}, {vr(S+2,2)}")
    A(f"v_pk_add_f32 {vr(S+4,2)}, {vr(S+4,2)}, {vr(S+6,2)}")
    A(f"v_pk_add_f32 {vr(S,2)}, {vr(S,2)}, {vr(S+4,2)}")
    A(f"v_add_f32 v{Lr}, v{S}, v{S+1}")
    A(f"v_add_f32_dpp v{Lr}, v{Lr}, v{Lr} row_ror:4 {DPPF}")
    A(f"v_add_f32_dpp v{Lr}, v{Lr}, v{Lr} row_ror:8 {DPPF}")
    rows_reduce("v_add_f32", Lr, TM+2)
    A(f"s_lshl_b32 {sT0}, {XX}, 12"); A(f"s_lshl_b32 {sT1}, {J_}, 5"); A(f"s_add_u32 {sT0}, {sT0}, {sT1}")
    A(f"s_lshl_b32 {sT1}, {W_}, 3"); A(f"s_add_u32 {sT0}, {sT0}, {sT1}"); A(f"s_add_u32 {sT0}, {sT0}, {ST}")
    A(f"v_lshl_add_u32 v10, v5, 10, {sT0}")
    A(f"s_lshl_b32 {sT1}, {W_}, 2")
    A(f"v_lshl_add_u32 v11, v5, 4, {sT1}")
    A(f"v_min_u32 v{M_}, -2, v{M_}"); A(f"v_min_u32 v{Lr}, -2, v{Lr}")
    A(f"s_cmp_eq_u32 {sMODE}, 0")
    A("s_mov_b64 exec, 0xf")
    if "s" not in skip:
        mstore([f"global_store_dwordx2 v10, {vr(M_,2)}, {sWS}"]); vm.issue("stats", store=True)
    A(f"ds_write_b32 v11, v{M_} offset:{L_M}")
    A("s_mov_b64 exec, -1")
    for _ in range(smload): load("V", nv); nv += 1
    stamp(8)
    for r in range(32): A(f"v_mov_b32 v{AT[0]+r}, 0")
    def build_at(blk):
        for t in range(4):
            for r in range(4):
                n = 4*((t - r) % 4)
                ctl = f"row_ror:{n}" if n else "quad_perm:[0,1,2,3]"
                A(f"v_mov_b32_dpp v{AT[blk&1]+4*t+r}, v{P+blk} {ctl} row_mask:0xf bank_mask:{1<<t:#x}")
    def perm(blk, r, e):
        A(f"v_perm_b32 v{QD+4*e+r}, v{vreg(8*blk+2*r+1)+(e>>1)}, v{vreg(8*blk+2*r)+(e>>1)}, {sSELHI if e&1 else sSELLO}")
    def pvm(blk, e):
        c = "0" if (blk == 0 and (e & 3) == 0) else vr(O+4*(e>>2),4)
        A(f"v_mfma_f32_16x16x32_bf16 {vr(O+4*(e>>2),4)}, {vr(AT[blk&1]+4*(e&3),4)}, {vr(QD+4*e,4)}, {c}")
    def pv(blk):
        for r in range(3):
            vm.wait(("V", 8*blk+2*r+1))
            for e in range(8): perm(blk, r, e)
        vm.wait(("V", 8*blk+7))
        perm(blk, 3, 0); perm(blk, 3, 1); perm(blk, 3, 2)
        for e in range(8):
            pvm(blk, e)
            if e + 3 < 8: perm(blk, 3, e+3)
    if smint: load("V", nv); nv += 1
    build_at(0)
    if smint: load("V", nv); nv += 1
    build_at(1)
    while nv < min(pv0, 32): load("V", nv); nv += 1
    if pv0 <= 32: pv(0); build_at(2)
    while nv < min(pv1, 32): load("V", nv); nv += 1
    if pv1 <= 32: pv(1); build_at(3)
    while nv < 32: load("V", nv); nv += 1
    A("s_waitcnt lgkmcnt(0)")
    stamp(9)
    A("s_barrier")
    F = TM + 4
    A(f"s_lshl_b32 {sT0}, {W_}, 4")
    A(f"v_mov_b32 v10, {sT0}")
    A(f"ds_read_b128 {vr(F,4)}, v10 offset:{L_M}")
    A(f"s_lshl_b32 {sT0}, {W_}, 11")
    A(f"v_lshl_add_u32 v12, v0, 2, {sT0}")
    A(f"s_lshl_b32 {sT0}, {W_}, 9")
    A(f"v_lshl_add_u32 v13, v0, 3, {sT0}")
    A(f"s_lshl_b32 {sT0}, {XX}, 15"); A(f"s_lshl_b32 {sT1}, {W_}, 13"); A(f"s_add_u32 {sT0}, {sT0}, {sT1}")
    A(f"s_lshl_b32 {sT1}, {J_}, 6"); A(f"s_add_u32 {sT0}, {sT0}, {sT1}"); A(f"s_add_u32 {sT0}, {sT0}, {IN1}")
    A(f"v_lshl_add_u32 v14, v3, 11, {sT0}")
    A("v_lshl_add_u32 v14, v2, 2, v14")
    A("s_waitcnt lgkmcnt(0)")
    A(f"v_max3_f32 v10, v{F}, v{F+1}, v{F+2}")
    A(f"v_max_f32 v10, v10, v{F+3}")
    for i in range(4): A(f"v_sub_f32 v{F+i}, v{F+i}, v10")
    for i in range(4): A(f"v_mul_f32 v{F+i}, {sL2E}, v{F+i}")
    for i in range(4): A(f"v_exp_f32 v{F+i}, v{F+i}")
    if pv0 > 32: pv(0); build_at(2)
    if pv1 > 32: pv(1); build_at(3)
    pv(2)
    stamp(10)
    pv(3)
    for h in range(4):
        A(f"ds_write2st64_b32 v12, v{O+h}, v{O+4+h} offset0:{L_O//256+2*h} offset1:{L_O//256+2*h+1}")
    A("s_waitcnt lgkmcnt(0)")
    stamp(11)
    A("s_barrier")
    R = QD
    for w in range(4): A(f"ds_read_b64 {vr(R+2*w,2)}, v13 offset:{L_O+2048*w}")
    A(f"s_cmp_eq_u32 {sMODE}, 0")
    A("s_waitcnt lgkmcnt(0)")
    A(f"v_pk_mul_f32 {vr(R,2)}, {vr(R,2)}, {vr(F,2)} op_sel_hi:[1,0]")
    A(f"v_pk_fma_f32 {vr(R,2)}, {vr(R+2,2)}, {vr(F,2)}, {vr(R,2)} op_sel:[0,1,0] op_sel_hi:[1,1,1]")
    A(f"v_pk_fma_f32 {vr(R,2)}, {vr(R+4,2)}, {vr(F+2,2)}, {vr(R,2)} op_sel_hi:[1,0,1]")
    A(f"v_pk_fma_f32 {vr(R,2)}, {vr(R+6,2)}, {vr(F+2,2)}, {vr(R,2)} op_sel:[0,1,0] op_sel_hi:[1,1,1]")
    A(f"v_cvt_pk_bf16_f32 v{R}, v{R}, v{R+1}")
    A(f"v_min_u32 v{R}, -2, v{R}")
    mstore([f"global_store_dword v14, v{R}, {sWS}"])
    stamp(12)
    if diag:
        A(f"s_cmp_eq_u32 {sMODE}, 0"); A("s_cbranch_scc1 L_dm"); stamp(13); A("L_dm:")
    A("s_barrier")
    if wbl2 & 2:
        A(f"s_lshl_b32 {sT1}, {J_}, 3"); A(f"s_add_u32 {sT1}, {sT1}, {W_}"); A(f"s_cmp_lg_u32 {sT1}, 0"); A("s_cbranch_scc1 L_fin")
        A("buffer_wbl2 sc1")
    A("L_fin:")
    if probe >= 0:
        stamp(14)
        A("s_waitcnt vmcnt(0)")
        stamp(15)
        A("s_waitcnt lgkmcnt(0)")
        A("v_readfirstlane_b32 s40, v1")
        if pwave >= 0:
            A(f"s_cmp_lg_u32 s40, {pwave}"); A("s_cbranch_scc1 L_end")
        if pwg >= 0:
            A(f"s_cmp_lg_u32 s2, {pwg}"); A("s_cbranch_scc1 L_end")
        A("s_sub_u32 s41, s66, s64"); A(f"s_mul_i32 s41, s41, {pmul}"); A("s_add_u32 s41, s41, 4000")
        if pxcc:
            A("s_getreg_b32 s42, hwreg(HW_REG_XCC_ID, 0, 4)"); A(f"s_and_b32 s42, s42, {pxcc}"); A("s_mul_i32 s42, s42, 1000"); A("s_add_u32 s41, s41, s42")
        A("L_spin:")
        A("s_memrealtime s[68:69]"); A("s_waitcnt lgkmcnt(0)")
        A("s_sub_u32 s42, s68, s64"); A("s_cmp_lt_u32 s42, s41"); A("s_cbranch_scc1 L_spin")
    if diag:
        stamp(14)
        A("s_waitcnt vmcnt(0)")
        stamp(15)
        A("s_waitcnt lgkmcnt(0)")
        A("L_dl:"); A("s_sleep 16"); A("s_memrealtime s[60:61]"); A("s_waitcnt lgkmcnt(0)"); A("s_sub_u32 s60, s60, s64"); A("s_cmp_lt_u32 s60, 2200"); A("s_cbranch_scc1 L_dl")
        A("s_mov_b64 exec, 1")
        A("v_readfirstlane_b32 s40, v1")
        A("s_lshl_b32 s41, s2, 3"); A("s_add_u32 s40, s40, s41"); A("s_lshl_b32 s40, s40, 8"); A("s_add_u32 s40, s40, 0x10000000")
        A("v_mov_b32 v2, s40")
        for k in range(16):
            A(f"v_mov_b32 v4, s{64+2*k}"); A(f"v_mov_b32 v5, s{65+2*k}")
            A(f"global_store_dwordx2 v2, v[4:5], {sWS} offset:{8*k}")
            A("s_nop 1")
    A("L_end:")
    A("s_endpgm")
    if padT:
        A("L_tab:")
        for wg in range(256):
            x, j = wg & 7, wg >> 3
            a_ = PERM[j]
            if a_ < 16: c = 512 if (a_ >> 1) == 3 else 256
            elif (x & 1) and a_ >= 28: c = 0
            else: c = 384 if BLK[x][(a_ >> 2) & 3] % 4 == 3 else 256
            o = 128 if ((x & 1) and j >= 24) else 192
            if (x & 1) and j >= 24: c -= 72
            if (j & 7) == 3: o *= 2
            if j == 31: c += 90
            T = padTo if (x & 1) and padTo else padT
            A(f".long {max(0, round((T - c - o) / 36))}")
    A('.section .rodata,"a"'); A(".p2align 6"); A(f".amdhsa_kernel {KNAME}")
    A("  .amdhsa_next_free_vgpr 256"); A("  .amdhsa_next_free_sgpr 102"); A("  .amdhsa_accum_offset 256")
    A("  .amdhsa_group_segment_fixed_size 0"); A("  .amdhsa_kernarg_size 96"); A("  .amdhsa_user_sgpr_count 2")
    A("  .amdhsa_user_sgpr_kernarg_segment_ptr 1"); A("  .amdhsa_system_sgpr_workgroup_id_x 1")
    A("  .amdhsa_float_denorm_mode_32 3")
    A(".end_amdhsa_kernel")
    lines = []
    for l in L: lines.extend(l.split("\n"))
    lines = hazard_pass(lines)
    return "\n".join(lines) + "\n"

if __name__ == "__main__":
    ap = argparse.ArgumentParser()
    ap.add_argument("out")
    ap.add_argument("--opt", nargs="*", default=[])
    a = ap.parse_args()
    kw = {}
    for o in a.opt:
        k, v = o.split("=")
        try: v = int(v)
        except ValueError: pass
        kw[k] = v
    open(a.out, "w").write(gen(**kw))
```

```python
import sys, argparse
sys.path.insert(0, "gen")
from asmlib import *

KNAME = "parallel_sum__sliding_block_cached__swiglu_ffn__decode_kernel"
QP    = 0x000000
GP    = 0x040000
CLR   = 0x080000
EPOCH = 0x081000
ST    = 0x088000
IN1   = 0x090000
ZF    = 0x082000
ACC   = 0x100000
IN2   = 0x100000
L_PA, L_O, L_Q, L_M, L_MODE, L_CNT, L_X = 0, 4096, 12288, 13312, 13376, 13380, 4096
LDS_BYTES = 13440
LOG2E = 0x3fb8aa3b
SCALE = 0x3db504f3
EPS = 0x3727c5ac
SPIN = 1 << 22

HEADER = open("parallel_sum__sliding_block_cached__swiglu_ffn__decode.s.ref").read().split("; Override launch")[0]

def gen(diag=False, nt="nt", ntw="nt", nB0=3, nVf=12, swz="xorj", fast=1, pollsleep=0, prefetch=1, align=1,
        skip="", qkload=2, smload=2, pv0=19, pv1=27, walk=0, ldsync=1, h1early=1, tlb=0, in2touch=0, pubtouch=0, segsh=8, outtouch=0, remap=-1, sched=1, ox4=0, ax4=0, h1pipe=0, zearly=1, h1sc1=0, wdfirst=0, mixmode=0, pert1=0, pertall=0, qkint=0, smint=0, padT=0, padTo=0, cmap=1, nohello=0, pubsc1=0, outsc1=0, wbl2=0, pad2=0, cw=0, h2sleep=0, h2pre=0, pubdelay=0, condelay=0, pxcc=0, probe=-1, pwave=-1, pwg=-1, pmul=4):
    L = []
    A = L.append
    def stamp(k):
        if probe >= 0:
            if k == 0: A("s_memrealtime s[64:65]"); A("s_memrealtime s[66:67]")
            elif k == probe: A("s_memrealtime s[66:67]")
        if diag:
            A(f"s_memrealtime s[{64+2*k}:{65+2*k}]")
            if k == 1:
                for q in range(2, 16): A(f"s_mov_b64 s[{64+2*q}:{65+2*q}], 0")
    uid = [0]
    def lab(p):
        uid[0] += 1
        return f"L_{p}_{uid[0]}"
    DPPF = "row_mask:0xf bank_mask:0xf"
    sX, sK, sV, sWQ, sWO, sG, sU, sWD, sOUT, sDBG, sWS = (f"s[{a}:{a+1}]" for a in (8,10,12,14,16,20,22,24,26,28,30))
    W_, XX, J_, B_, S_ = "s3", "s4", "s5", "s6", "s7"
    sPITCH, sCB, sKH, sFB, sHB = "s32", "s33", "s34", "s35", "s36"
    sSELLO, sSELHI, sHI = "s37", "s38", "s39"
    sT0, sT1, sT2, sT3 = "s40", "s41", "s42", "s43"
    sSPIN = "s44"; sMODE = "s45"
    sPK = "s[46:47]"
    sSAVE = "s[48:49]"
    sTB = "s[50:51]"
    sRB = "s52"; sL2E = "s53"; sTAG = "s56"; sNOA = "s57"; JA = "s62"
    if remap == 1:
        PERM = [None]*32
        for i, j in enumerate((3, 11, 19, 27)): PERM[j] = 28 + i
        for a, j in zip((6, 7, 16, 17, 18, 19), (24, 25, 26, 28, 29, 30)): PERM[j] = a
        rest = [a for a in range(32) if a not in PERM]
        for j in range(32):
            if PERM[j] is None: PERM[j] = rest.pop(0)
        heavy = [3, 7, 11, 15, 19, 23, 27]; norm = [b for b in range(28) if b not in heavy]
        BLK = []
        for x in range(8):
            row = [] if x == 0 else [heavy.pop(0)]
            while len(row) < (3 if x & 1 else 4): row.append(norm.pop(0))
            BLK.append(row + [0]*(4 - len(row)))
    else:
        PERM = list(range(32))
        BLK = [[min(27, ((7*x + 1) >> 1) + u) for u in range(4)] for x in range(8)]

    def unpack(lo, hi, src):
        A(f"v_lshlrev_b32 v{lo}, 16, v{src}")
        A(f"v_and_b32 v{hi}, {sHI}, v{src}")
    def rows_reduce(op, v, t):
        A(f"v_mov_b32 v{t}, v{v}")
        A(f"v_permlane16_swap_b32 v{v}, v{t}")
        A(f"{op} v{v}, v{v}, v{t}")
        A(f"v_mov_b32 v{t}, v{v}")
        A(f"v_permlane32_swap_b32 v{v}, v{t}")
        A(f"{op} v{v}, v{v}, v{t}")
    def max_tree_u32(dst, regs):
        regs = list(regs)
        A(f"v_max3_u32 v{dst}, v{regs[0]}, v{regs[1]}, v{regs[2]}")
        regs = regs[3:]
        while len(regs) >= 2:
            A(f"v_max3_u32 v{dst}, v{dst}, v{regs[0]}, v{regs[1]}"); regs = regs[2:]
        if regs: A(f"v_max_u32 v{dst}, v{dst}, v{regs[0]}")
    def poll(loads, regs, tmp, first_issued=False, tagged=False, sleep=None):
        lp, dn = lab("poll"), lab("pdone")
        def check():
            r = list(regs)
            if tagged:
                if len(r) == 1:
                    A(f"v_cmp_ne_u32 vcc, {sTAG}, v{r[0]}")
                else:
                    A(f"v_xor_b32 v{tmp}, {sTAG}, v{r[0]}")
                    for q in r[1:]: A(f"v_bitop3_b32 v{tmp}, v{q}, {sTAG}, v{tmp} bitop3:0xbe")
                    A(f"v_cmp_ne_u32 vcc, 0, v{tmp}")
            else:
                max_tree_u32(tmp, r)
                A(f"v_cmp_eq_u32 vcc, -1, v{tmp}")
        A(f"s_mov_b32 {sSPIN}, {SPIN}")
        if first_issued:
            chk = lab("pchk"); A(f"s_branch {chk}")
        A(f"{lp}:")
        for l in loads: A(l)
        A("s_waitcnt vmcnt(0)")
        if first_issued: A(f"{chk}:")
        check()
        A(f"s_cbranch_vccz {dn}")
        A("s_mov_b64 exec, vcc")
        if sleep is None: sleep = pollsleep
        if sleep: A(f"s_sleep {sleep}")
        A(f"s_sub_u32 {sSPIN}, {sSPIN}, 1")
        A(f"s_cbranch_scc0 {lp}")
        A(f"{dn}:")
        A("s_mov_b64 exec, -1")
    def mstore(instrs):
        if not fast:
            for i in instrs: A(i + " sc1")
            return
        sl, dn = lab("slow"), lab("sdone")
        A(f"s_cbranch_scc0 {sl}")
        for i in instrs: A(i)
        A(f"s_branch {dn}")
        A(f"{sl}:")
        for i in instrs: A(i + " sc1")
        A(f"{dn}:")
    def x4frag(R, tmp, dst):
        for h in range(2):
            A(f"v_mov_b32_dpp v{tmp+h}, v{R+h} row_ror:8 row_mask:0xf bank_mask:0x3")
        for h in range(2):
            A(f"v_mov_b32_dpp v{R+h}, v{R+2+h} row_ror:8 row_mask:0xf bank_mask:0xc")
        for h in range(2):
            A(f"v_mov_b32_dpp v{R+2+h}, v{tmp+h} quad_perm:[0,1,2,3] row_mask:0xf bank_mask:0x3")
        for e in range(4):
            A(f"v_perm_b32 v{dst(e)}, v{R+2+(e>>1)}, v{R+(e>>1)}, {sSELHI if e&1 else sSELLO}")
    def consts():
        A(f"s_mov_b32 {sHI}, 0xffff0000")
        A(f"s_mov_b32 {sSELLO}, 0x05040100"); A(f"s_mov_b32 {sSELHI}, 0x07060302")
        A(f"s_mov_b32 {sL2E}, {LOG2E:#x}")

    A(HEADER.rstrip())
    A(f"; @launch grid=(256,1,1) block=(512,1,1) lds={LDS_BYTES}")
    A("""; One fused launch, 256 workgroups (one per CU), 8 waves each. x = wg & 7 (kv head), j = wg >> 3.
; Final reduction: returning f32 atomics on {sum, count} pairs; the workgroup that arrives last writes the output.""")
    A('.amdgcn_target "amdgcn-amd-amdhsa--gfx950"')
    A(".text")
    if align:
        A(".p2align 12"); A(f".fill {0xD00//4}, 4, 0xbf810000")
    A(f".globl {KNAME}"); A(".p2align 8"); A(f".type {KNAME},@function"); A(f"{KNAME}:")
    stamp(0)
    A("s_cmp_ge_u32 s2, 256"); A("s_cbranch_scc1 L_end")
    A("s_load_dwordx16 s[8:23], s[0:1], 0")
    A("s_load_dwordx8 s[24:31], s[0:1], 64")
    A("v_lshrrev_b32 v1, 6, v0")
    A("v_and_b32 v0, 63, v0")
    A(f"v_readfirstlane_b32 {W_}, v1")
    A(f"s_and_b32 {XX}, s2, 7")
    A(f"s_lshr_b32 {J_}, s2, 3")
    A("v_and_b32 v2, 15, v0")
    A("v_lshrrev_b32 v3, 4, v0")
    A("v_bfe_u32 v4, v0, 2, 2")
    A("v_and_b32 v5, 3, v0")
    A(f"s_lshr_b32 {B_}, {J_}, 3"); A(f"s_and_b32 {S_}, {J_}, 7")
    A(f"s_cmp_ge_u32 {W_}, 4"); A("s_cbranch_scc1 L_stream")

    vm = VM(A)
    X, XA, T, U, AF, BF, D = 16, 32, 40, 72, 104, 112, 144
    pk = lambda r: r[0] | r[1] << 8 | r[2] << 16 | r[3] << 24
    if remap == -1:
        A(f"s_mov_b32 {JA}, {J_}")
        A(f"s_mul_i32 {sFB}, {XX}, 7"); A(f"s_add_u32 {sFB}, {sFB}, 1"); A(f"s_lshr_b32 {sFB}, {sFB}, 1")
        A(f"s_mul_i32 {sFB}, {sFB}, 0x01010101"); A(f"s_add_u32 {sFB}, {sFB}, 0x03020100")
    else:
        A(f"s_lshr_b32 m0, {J_}, 2")
        for i in range(8): A(f"s_mov_b32 s{44+i}, {pk(PERM[4*i:4*i+4]):#x}")
        A(f"s_movrels_b32 {JA}, s44")
        A(f"s_mov_b32 m0, {XX}")
        for i in range(8): A(f"s_mov_b32 s{44+i}, {pk(BLK[i]):#x}")
        A(f"s_movrels_b32 {sFB}, s44")
        A(f"s_lshl_b32 {sT0}, {J_}, 3"); A(f"s_lshr_b32 {JA}, {JA}, {sT0}"); A(f"s_and_b32 {JA}, {JA}, 31")
    A(f"s_and_b32 {sKH}, {JA}, 1")
    A(f"s_lshr_b32 {sT0}, {JA}, 1")
    A(f"s_lshl_b32 {sT1}, {XX}, 3"); A(f"s_add_u32 {sT1}, {sT1}, {sT0}")
    A(f"s_lshl_b32 {sT2}, {JA}, 1"); A(f"s_and_b32 {sT2}, {sT2}, 24"); A(f"s_lshr_b32 {sT2}, {sFB}, {sT2}"); A(f"s_and_b32 {sT2}, {sT2}, 31")
    A(f"s_cmp_lt_u32 {JA}, 16")
    A(f"s_cselect_b32 {sCB}, {sT1}, {sT2}")
    A(f"s_movk_i32 {sT3}, 3584")
    A(f"s_cselect_b32 {sPITCH}, 8192, {sT3}")
    A(f"s_lshl_b32 {sT0}, {W_}, 10")
    A(f"v_lshl_add_u32 v6, v0, 4, {sT0}")
    A(f"s_lshl_b32 {sT0}, {sKH}, 2"); A(f"s_add_u32 {sT0}, {sT0}, {W_}"); A(f"s_lshl_b32 {sT0}, {sT0}, 6")
    A(f"v_lshl_add_u32 v7, v3, 4, {sT0}")
    A("v_lshlrev_b32 v8, 1, v7")
    A("v_lshl_add_u32 v8, v4, 10, v8")
    A(f"s_lshl_b32 {sT1}, {sCB}, 7")
    if ax4:
        A("v_and_b32 v9, 7, v0"); A("v_bfe_u32 v13, v0, 3, 1")
        A(f"v_lshl_add_u32 v10, v9, 4, {sT1}")
        A("v_add_u32 v7, v7, v13")
        A("v_lshl_add_u32 v13, v9, 1, v13")
        A(f"v_mad_u32_u24 v9, v7, {sPITCH}, v10")
        A(f"s_lshl_b32 {sPITCH}, {sPITCH}, 1")
        A("v_sub_u32 v13, v13, v2")
        A("v_lshl_add_u32 v7, v13, 4, v6")
    else:
        A(f"v_lshl_add_u32 v9, v2, 3, {sT1}")
        A(f"v_mad_u32_u24 v9, v7, {sPITCH}, v9")
    def zaddr():
        for i in range(4): A(f"v_mov_b32 v{U+i}, 0")
        A(f"s_lshl_b32 {sT0}, {XX}, {5+segsh}"); A(f"s_add_u32 {sT0}, {sT0}, {ACC}")
        A(f"v_lshrrev_b32 v{U+4}, 2, v0")
        A(f"v_lshl_add_u32 v{U+4}, v{U+4}, {segsh}, {sT0}")
        A(f"v_lshl_add_u32 v{U+4}, v5, 4, v{U+4}")
        A(f"v_add_u32 v{U+5}, {16 << segsh}, v{U+4}")
    def zstore():
        A(f"global_store_dwordx4 v{U+4}, {vr(U,4)}, {sWS} sc1")
        A(f"global_store_dwordx4 v{U+5}, {vr(U,4)}, {sWS} sc1")
    if zearly:
        zaddr()
        A(f"s_lshl_b32 s63, {J_}, 2"); A(f"s_add_u32 s63, s63, {W_}")
    A(f"s_getreg_b32 {sHB}, hwreg(HW_REG_XCC_ID, 0, 4)")
    A(f"s_bitset1_b32 {sHB}, 7")
    A(f"s_lshl_b32 {sT2}, {XX}, 5"); A(f"s_add_u32 {sT3}, {sT2}, {J_}")
    A(f"v_mov_b32 v10, {sT3}"); A(f"v_mov_b32 v11, {sHB}")
    A("v_and_b32 v12, 7, v0")
    A(f"v_lshl_add_u32 v12, v12, 2, {sT2}")
    A(f"s_lshl_b32 {sNOA}, {JA}, 3"); A(f"s_or_b32 {sNOA}, {sNOA}, {XX}")
    A(f"s_and_b32 {sNOA}, {sNOA}, 0xe1")
    A(f"s_bitcmp1_b32 {JA}, 1")
    A("s_waitcnt lgkmcnt(0)")
    A(f"s_cselect_b64 {sTB}, {sU}, {sG}")
    A(f"s_cmp_lt_u32 {JA}, 16")
    A(f"s_cselect_b64 {sTB}, {sWQ}, {sTB}")
    if not nohello: A(f"global_store_byte v10, v11, {sDBG}")
    A(f"s_load_dword {sTAG}, {sWS}, {EPOCH:#x}")
    if zearly:
        A("s_cmp_lg_u32 s63, 2"); A("s_cbranch_scc1 L_noz")
        zstore()
        A("L_noz:")
    A(f"global_load_dwordx4 {vr(X,4)}, v6, {sX}"); vm.issue("x")
    A(f"s_cmp_eq_u32 {sNOA}, 0xe1"); A("s_cbranch_scc1 L_noA")
    if ax4:
        for i in range(8):
            A(f"global_load_dwordx4 {vr(T+4*i,4)}, v9, {sTB} {ntw}"); vm.issue(("t", i))
            if i < 7: A(f"v_add_u32 v9, {sPITCH}, v9")
    else:
      for jj in range(16):
        A(f"global_load_dwordx2 {vr(T+2*jj,2)}, v9, {sTB} {ntw}"); vm.issue(("t", jj))
        if jj < 15: A(f"v_add_u32 v9, {sPITCH}, v9")
    stamp(1)
    consts()
    A(f"v_mov_b32 v15, {L_CNT}"); A("v_mov_b32 v13, 0")
    A("ds_write_b32 v15, v13")
    vm.wait("x")
    stamp(2)
    for i in range(4): unpack(U+2*i, U+2*i+1, X+i)
    def wave_sum(dst):
        A(f"v_pk_add_f32 {vr(XA,2)}, {vr(XA,2)}, {vr(XA+2,2)}")
        A(f"v_add_f32 v{dst}, v{XA}, v{XA+1}")
        A(f"v_add_f32_dpp v{dst}, v{dst}, v{dst} quad_perm:[1,0,3,2] {DPPF}")
        A(f"v_add_f32_dpp v{dst}, v{dst}, v{dst} quad_perm:[2,3,0,1] {DPPF}")
        A(f"v_add_f32_dpp v{dst}, v{dst}, v{dst} row_ror:4 {DPPF}")
        A(f"v_add_f32_dpp v{dst}, v{dst}, v{dst} row_ror:8 {DPPF}")
        rows_reduce("v_add_f32", dst, XA+4)
        A(f"v_mul_f32 v{dst}, 0x3b000000, v{dst}")
    A(f"v_pk_add_f32 {vr(XA,2)}, {vr(U,2)}, {vr(U+2,2)}")
    A(f"v_pk_add_f32 {vr(XA+2,2)}, {vr(U+4,2)}, {vr(U+6,2)}")
    wave_sum(10)
    for i in range(4):
        A(f"v_pk_add_f32 {vr(U+8+2*i,2)}, {vr(U+2*i,2)}, v[10:11] op_sel_hi:[1,0] neg_lo:[0,1] neg_hi:[0,1]")
    A(f"v_pk_mul_f32 {vr(XA,2)}, {vr(U+8,2)}, {vr(U+8,2)}")
    A(f"v_pk_mul_f32 {vr(XA+2,2)}, {vr(U+10,2)}, {vr(U+10,2)}")
    A(f"v_pk_fma_f32 {vr(XA,2)}, {vr(U+12,2)}, {vr(U+12,2)}, {vr(XA,2)}")
    A(f"v_pk_fma_f32 {vr(XA+2,2)}, {vr(U+14,2)}, {vr(U+14,2)}, {vr(XA+2,2)}")
    wave_sum(11)
    A("v_cvt_pk_bf16_f32 v13, v10, v11")
    unpack(10, 11, 13)
    A(f"v_add_f32 v11, {EPS:#x}, v11")
    for i in range(4):
        A(f"v_pk_add_f32 {vr(U+2*i,2)}, {vr(U+2*i,2)}, v[10:11] op_sel_hi:[1,0] neg_lo:[0,1] neg_hi:[0,1]")
    A("v_cvt_pk_bf16_f32 v11, v11, v11")
    A("v_lshlrev_b32 v11, 16, v11")
    A("v_sqrt_f32 v11, v11")
    for i in range(4): A(f"v_cvt_pk_bf16_f32 v{X+i}, v{U+2*i}, v{U+2*i+1}")
    A("v_cvt_pk_bf16_f32 v11, v11, v11")
    A("v_lshlrev_b32 v11, 16, v11")
    A("v_rcp_f32 v10, v11")
    for i in range(4): unpack(U+2*i, U+2*i+1, X+i)
    for i in range(4):
        A(f"v_pk_mul_f32 {vr(U+2*i,2)}, {vr(U+2*i,2)}, v[10:11] op_sel_hi:[1,0]")
    for i in range(4): A(f"v_cvt_pk_bf16_f32 v{X+i}, v{U+2*i}, v{U+2*i+1}")
    A(f"ds_write_b128 v6, {vr(X,4)} offset:{L_X}")
    A("s_waitcnt lgkmcnt(0)")
    stamp(3)
    A("s_barrier")
    A(f"global_load_dword v14, v12, {sDBG} sc1"); vm.issue("mode")
    for i in range(2): A(f"ds_read_b128 {vr(AF+4*i,4)}, v8 offset:{L_X+16*i}")
    A("s_waitcnt lgkmcnt(0)")
    for blk in range(2):
        if ax4:
            for r in range(4):
                vm.wait(("t", 4*blk+r))
                x4frag(T+4*(4*blk+r), 10, lambda e: BF+16*blk+4*e+r)
        else:
          vm.wait(("t", 8*blk+7))
          for e in range(4):
            for r in range(4):
                A(f"v_perm_b32 v{BF+16*blk+4*e+r}, v{T+2*(8*blk+2*r+1)+(e>>1)}, v{T+2*(8*blk+2*r)+(e>>1)}, {sSELHI if e&1 else sSELLO}")
        for e in range(4):
            c = "0" if blk == 0 else vr(D+4*e,4)
            A(f"v_mfma_f32_16x16x32_bf16 {vr(D+4*e,4)}, {vr(AF+4*blk,4)}, {vr(BF+16*blk+4*e,4)}, {c}")
    A(f"ds_write2_b32 v{7 if ax4 else 6}, v{D}, v{D+4} offset0:0 offset1:1")
    A(f"ds_write2_b32 v{7 if ax4 else 6}, v{D+8}, v{D+12} offset0:2 offset1:3")
    if ldsync:
        A("v_mov_b32 v13, 1")
        A("s_mov_b64 exec, 1")
        A("ds_add_u32 v15, v13")
        A("s_mov_b64 exec, -1")
    A("s_branch L_B0s")
    A("L_noA:")
    stamp(1)
    consts()
    A("s_waitcnt vmcnt(0)")
    A("s_barrier")
    A(f"global_load_dword v14, v12, {sDBG} sc1")
    A("L_B0s:")
    A("s_waitcnt lgkmcnt(0)")
    stamp(4)
    stamp(5)
    A(f"s_mul_i32 {sTAG}, {sTAG}, 0x0019660d"); A(f"s_add_u32 {sTAG}, {sTAG}, 0x3c6ef35f")
    A(f"s_mul_i32 {sT0}, {sHB}, 0x01010101")
    A(f"s_cmp_eq_u32 {W_}, 1"); A("s_cbranch_scc1 L_w1a")
    A(f"s_cmp_eq_u32 {W_}, 2"); A("s_cbranch_scc1 L_w2a")
    A("s_waitcnt vmcnt(0)")
    A(f"v_cmp_ne_u32 vcc, {sT0}, v14")
    A(f"s_mov_b32 {sMODE}, vcc_lo")
    if nohello: A(f"s_mov_b32 {sMODE}, 0")
    if mixmode: A(f"s_and_b32 {sT1}, {J_}, {mixmode}"); A(f"s_or_b32 {sMODE}, {sMODE}, {sT1}")
    A(f"s_cmp_eq_u32 {W_}, 3"); A("s_cbranch_scc1 L_clear")
    A(f"s_cmp_eq_u32 {sNOA}, 0xe1"); A("s_cbranch_scc1 L_qduty")
    if ldsync:
        A("L_cnt:")
        A("ds_read_b32 v13, v15")
        A("s_waitcnt lgkmcnt(0)")
        A("v_cmp_ne_u32 vcc, 4, v13")
        A("s_cbranch_vccnz L_cnt")
    A("v_lshlrev_b32 v10, 4, v0")
    for w in range(4): A(f"ds_read_b128 {vr(X+4*w,4)}, v10 offset:{L_PA+1024*w}")
    A(f"s_lshl_b32 {sT0}, {XX}, 15"); A(f"s_lshl_b32 {sT1}, {sKH}, 12"); A(f"s_add_u32 {sT1}, {sT0}, {sT1}")
    A(f"s_and_b32 {sT2}, {sCB}, 7"); A(f"s_lshl_b32 {sT2}, {sT2}, 9"); A(f"s_add_u32 {sT1}, {sT1}, {sT2}")
    A(f"v_lshl_add_u32 v11, v2, 4, {sT1}")
    A("v_lshl_add_u32 v11, v3, 13, v11")
    A("v_add_u32 v12, 256, v11")
    A(f"s_cmp_lt_u32 {JA}, 16"); A("s_cbranch_scc1 L_pubq")
    A(f"s_bfe_u32 {sT1}, {JA}, 0x20002"); A(f"s_lshl_b32 {sT1}, {sT1}, 13"); A(f"s_add_u32 {sT0}, {sT0}, {sT1}")
    A(f"s_and_b32 {sT1}, {JA}, 3"); A(f"s_lshl_b32 {sT1}, {sT1}, 8"); A(f"s_add_u32 {sT0}, {sT0}, {sT1}"); A(f"s_add_u32 {sT0}, {sT0}, {GP}")
    A(f"v_lshl_add_u32 v11, v4, 11, {sT0}")
    A("v_lshl_add_u32 v11, v3, 6, v11")
    A("v_lshl_add_u32 v11, v5, 4, v11")
    A("v_add_u32 v12, 1024, v11")
    A("L_pubq:")
    for i in range(4): A(f"v_mov_b32 v{XA+2*i+1}, {sTAG}")
    A(f"s_cmp_eq_u32 {sMODE}, 0")
    A("s_waitcnt lgkmcnt(0)")
    for h in range(2):
        A(f"v_pk_add_f32 {vr(X+2*h,2)}, {vr(X+2*h,2)}, {vr(X+4+2*h,2)}")
        A(f"v_pk_add_f32 {vr(X+8+2*h,2)}, {vr(X+8+2*h,2)}, {vr(X+12+2*h,2)}")
    for i in range(4): A(f"v_add_f32 v{XA+2*i}, v{X+i}, v{X+8+i}")
    if "p" not in skip:
        if pubsc1:
            A(f"global_store_dwordx4 v11, {vr(XA,4)}, {sWS} sc1"); A(f"global_store_dwordx4 v12, {vr(XA+4,4)}, {sWS} sc1")
        else:
            mstore([f"global_store_dwordx4 v11, {vr(XA,4)}, {sWS}", f"global_store_dwordx4 v12, {vr(XA+4,4)}, {sWS}"])
    A("s_waitcnt vmcnt(0)")
    A("L_qduty:")
    stamp(6)
    A(f"s_lshl_b32 {sT0}, {XX}, 2"); A(f"s_add_u32 {sT0}, {sT0}, {B_}"); A(f"s_lshl_b32 {sT0}, {sT0}, 13"); A(f"s_add_u32 {sT0}, {sT0}, {QP+4096}")
    A(f"v_lshl_add_u32 v10, v0, 4, {sT0}")
    if "q" not in skip:
        poll([f"global_load_dwordx4 {vr(U+4*i,4)}, v10, {sWS} offset:{1024*i-4096} sc1" for i in range(8)], range(U+1, U+32, 2), 11, tagged=True)
    for i in range(8): A(f"v_add_f32 v{U+2*i}, v{U+2*i}, v{U+16+2*i}")
    for h in range(4): A(f"v_cvt_pk_bf16_f32 v{X+h}, v{U+4*h}, v{U+4*h+2}")
    A("v_and_b32 v10, 32, v0"); A("v_and_b32 v11, 1, v3")
    A("v_add_u32 v10, v10, v11")
    A("v_lshl_add_u32 v10, v2, 1, v10")
    A("v_lshlrev_b32 v10, 2, v10")
    A(f"ds_write2st64_b32 v10, v{X}, v{X+1} offset0:{L_Q//256} offset1:{L_Q//256+1}")
    A(f"ds_write2st64_b32 v10, v{X+2}, v{X+3} offset0:{L_Q//256+2} offset1:{L_Q//256+3}")
    A("s_branch L_B1s")
    A("L_w1a:")
    if prefetch:
        A(f"s_cmp_lg_u32 {J_}, 31"); A("s_cbranch_scc1 L_B1s")
        A(f"s_getpc_b64 {sSAVE}")
        A("L_pc:")
        A("v_lshlrev_b32 v10, 7, v0")
        A("v_add_u32 v11, 0x2000, v10")
        A("v_min_u32 v10, L_end-L_pc, v10")
        A("v_min_u32 v11, L_end-L_pc, v11")
        A(f"global_load_dword v250, v10, {sSAVE}")
        A(f"global_load_dword v251, v11, {sSAVE}")
    A("s_branch L_B1s")
    A("L_w2a:")
    A(f"s_cmp_lg_u32 {J_}, 0"); A("s_cbranch_scc1 " + ("L_pad" if padT else "L_B1s"))
    if not zearly:
        zaddr(); zstore()
    if outtouch:
        A(f"s_lshl_b32 {sT0}, {XX}, 7")
        A(f"v_lshl_add_u32 v12, v5, 10, {sT0}")
        A(f"global_load_dword v248, v12, {sOUT}")
    A(f"s_lshl_b32 {sT0}, {XX}, 7"); A(f"s_add_u32 {sT0}, {sT0}, {ZF}")
    A(f"v_lshl_add_u32 v12, v2, 2, {sT0}"); A(f"v_mov_b32 v13, {sTAG}")
    A("s_waitcnt vmcnt(0)")
    A("s_mov_b64 exec, 0xffff")
    A(f"global_store_dword v12, v13, {sWS} sc1")
    A("s_mov_b64 exec, -1")
    if not padT: A("s_branch L_B1s")
    if padT:
        A("L_pad:")
        A(f"s_getpc_b64 {sSAVE}")
        A("L_pc2:")
        A(f"s_lshl_b32 {sT0}, s2, 2"); A(f"s_add_u32 {sT0}, {sT0}, L_tab-L_pc2"); A("s_add_u32 s48, s48, s40"); A("s_addc_u32 s49, s49, 0")
        A(f"s_load_dword {sT1}, {sSAVE}, 0")
        A("v_lshlrev_b32 v10, 6, v0")
        A("s_waitcnt lgkmcnt(0)")
        A("L_padl:")
        A(f"s_sub_u32 {sT1}, {sT1}, 1"); A("s_cbranch_scc1 L_B1s")
        A(f"global_load_dword v249, v10, {sX} sc1")
        A("s_branch L_padl")
    A("L_clear:")
    A(f"v_mov_b32 v13, {sMODE}"); A(f"v_mov_b32 v15, {L_MODE}")
    A("ds_write_b32 v15, v13")
    for i in range(4): A(f"v_mov_b32 v{X+i}, -1")
    A(f"s_lshl_b32 {sT0}, {XX}, 15"); A(f"s_lshl_b32 {sT1}, {J_}, 6"); A(f"s_add_u32 {sT0}, {sT0}, {sT1}"); A(f"s_add_u32 {sT0}, {sT0}, {IN1}")
    A("v_lshrrev_b32 v10, 2, v0")
    A(f"v_lshl_add_u32 v10, v10, 11, {sT0}")
    A("v_lshl_add_u32 v10, v5, 4, v10")
    A(f"s_lshl_b32 {sT0}, {XX}, 12"); A(f"s_lshl_b32 {sT1}, {J_}, 5"); A(f"s_add_u32 {sT0}, {sT0}, {sT1}"); A(f"s_add_u32 {sT0}, {sT0}, {ST}")
    A("v_bfe_u32 v11, v0, 3, 2"); A("v_and_b32 v12, 7, v0")
    A(f"v_lshl_add_u32 v11, v11, 10, {sT0}")
    A("v_lshl_add_u32 v11, v12, 2, v11")
    A(f"s_lshl_b32 {sT1}, {XX}, 5"); A(f"s_add_u32 {sT1}, {sT1}, {J_}"); A(f"s_lshl_b32 {sT1}, {sT1}, 2"); A(f"s_add_u32 {sT1}, {sT1}, {CLR}")
    A(f"v_mov_b32 v12, {sT1}"); A(f"v_mov_b32 v13, {sTAG}")
    A(f"s_cmp_eq_u32 {sMODE}, 0")
    if "c" not in skip:
        mstore([f"global_store_dwordx4 v10, {vr(X,4)}, {sWS}", f"global_store_dword v11, v{X}, {sWS}"])
    A("s_waitcnt vmcnt(0)")
    A("s_mov_b64 exec, 1")
    mstore([f"global_store_dword v12, v13, {sWS}"])
    A("s_mov_b64 exec, -1")
    A("L_B1s:")
    A("s_waitcnt lgkmcnt(0)")
    stamp(7)
    A("s_barrier")
    AD, AO, AS, AH1, AH2, AOUT, AIN2, ALW, XV = 160, 161, 162, 163, 164, 165, 166, 167, 168
    STT, WD, WO, HF, WT, BD, BO, DH, OA, DO = 24, 28, 36, 52, 56, 64, 72, 88, 104, 112
    Y = 144
    A(f"s_lshl_b32 {sRB}, {XX}, 2"); A(f"s_add_u32 {sRB}, {sRB}, {B_}")
    A(f"s_lshl_b32 {sT3}, {sRB}, 2"); A(f"s_add_u32 {sT3}, {sT3}, {W_}"); A(f"s_lshl_b32 {sT3}, {sT3}, 11")
    A(f"s_lshl_b32 {sT0}, {XX}, 7"); A(f"s_add_u32 {sT0}, {sT0}, {CLR}")
    A(f"v_lshl_add_u32 v13, v0, 2, {sT0}")
    A(f"s_lshl_b32 {sT0}, {S_}, 7"); A(f"s_add_u32 {sT0}, {sT0}, {ZF}")
    A("s_mov_b32 exec_lo, 0")
    A(f"v_mov_b32 v13, {sT0}")
    A("s_mov_b32 exec_lo, -1")
    cl = [f"global_load_dword v{Y+8}, v13, {sWS} sc1"]
    A(f"s_add_u32 {sT0}, {sT3}, {GP}")
    A(f"v_lshl_add_u32 v10, v5, 8, {sT0}")
    A("v_lshl_add_u32 v10, v4, 6, v10")
    A("v_lshl_add_u32 v10, v3, 4, v10")
    hl = [f"global_load_dwordx4 {vr(Y+4*i,4)}, v10, {sWS} offset:{1024*i} sc1" for i in range(2)]
    A(f"v_mov_b32 v{HF}, 0"); A(f"v_mov_b32 v{HF+1}, 0")
    A(f"s_and_b32 {sNOA}, s2, 0xc1")
    A(f"s_cmp_eq_u32 {sNOA}, 0xc1"); A("s_cbranch_scc1 L_noh")
    if "h" not in skip:
        poll(cl + hl, [Y+8, Y+1, Y+3, Y+5, Y+7], 11, tagged=True)
    for i in range(4): A(f"v_add_f32_dpp v{X+i}, v{Y+2*i}, v{Y+2*i} quad_perm:[1,0,3,2] {DPPF}")
    for i in range(2): A(f"v_cvt_pk_bf16_f32 v{X+4+i}, v{X+2*i}, v{X+2*i+1}")
    for i in range(2): unpack(X+2*i, X+2*i+1, X+4+i)
    for i in range(4): A(f"v_mul_f32 v{X+4+i}, {sL2E}, v{X+i}")
    for i in range(4): A(f"v_exp_f32 v{X+4+i}, -v{X+4+i}")
    for i in range(4): A(f"v_add_f32 v{X+4+i}, 1.0, v{X+4+i}")
    for i in range(4): A(f"v_rcp_f32 v{X+4+i}, v{X+4+i}")
    for i in range(4): A(f"v_mul_f32 v{X+4+i}, v{X+i}, v{X+4+i}")
    for i in range(2): A(f"v_cvt_pk_bf16_f32 v{Y+i}, v{X+4+2*i}, v{X+5+2*i}")
    for i in range(2): unpack(X+4+2*i, X+5+2*i, Y+i)
    for i in range(4): A(f"v_mul_f32_dpp v{X+4+i}, v{X+i}, v{X+4+i} quad_perm:[2,3,0,1] {DPPF}")
    A("v_cmp_eq_u32 vcc, 0, v5")
    for i in range(2): A(f"v_cvt_pk_bf16_f32 v{HF+i}, v{X+4+2*i}, v{X+5+2*i}")
    for i in range(2): A(f"v_cndmask_b32 v{HF+i}, 0, v{HF+i}, vcc")
    A("s_branch L_hdone")
    A("L_noh:")
    if "h" not in skip:
        poll(cl, [Y+8], 11, tagged=True)
    A("L_hdone:")
    A(f"s_lshl_b32 {sT1}, {S_}, 7")
    if ox4:
        A("v_and_b32 v13, 7, v0"); A("v_bfe_u32 v15, v0, 3, 1")
        A(f"v_lshl_add_u32 v10, v13, 4, {sT1}")
    else:
        A(f"v_lshl_add_u32 v10, v2, 3, {sT1}")
    A(f"s_lshl_b32 {sT2}, {B_}, 3"); A(f"s_lshr_b32 {sT2}, {sFB}, {sT2}"); A(f"s_and_b32 {sT2}, {sT2}, 31"); A(f"s_lshl_b32 {sT2}, {sT2}, 2"); A(f"s_add_u32 {sT2}, {sT2}, {W_}"); A(f"s_lshl_b32 {sT2}, {sT2}, 14")
    A(f"v_lshl_add_u32 v11, v3, 12, {sT2}")
    if ox4: A("v_lshl_add_u32 v11, v15, 10, v11")
    A(f"v_add_u32 v{AD}, v11, v10")
    A(f"s_lshl_b32 {sT2}, {sRB}, 7")
    A(f"s_lshl_b32 {sT0}, {W_}, 1"); A(f"s_add_u32 {sT2}, {sT2}, {sT0}")
    A("v_and_b32 v11, 1, v3"); A("v_lshrrev_b32 v12, 1, v3")
    A("v_lshl_add_u32 v11, v11, 6, v12")
    A(f"v_add_u32 v11, {sT2}, v11")
    if ox4: A("v_lshl_add_u32 v11, v15, 3, v11")
    A(f"v_lshl_add_u32 v{AO}, v11, 10, v10")
    A(f"s_lshl_b32 {sT2}, {sRB}, 10"); A(f"s_add_u32 {sT2}, {sT2}, {ST}")
    A(f"v_lshl_add_u32 v{AS}, v0, 4, {sT2}")
    A(f"s_add_u32 {sT2}, {sT3}, {IN1}")
    A(f"v_lshl_add_u32 v11, v4, 9, {sT2}")
    A("v_lshl_add_u32 v11, v5, 6, v11")
    A(f"v_lshl_add_u32 v{AH1}, v3, 4, v11")
    A(f"s_lshl_b32 {sT2}, {S_}, 2"); A(f"s_add_u32 {sT2}, {sT2}, {W_}"); A(f"s_lshl_b32 {sT2}, {sT2}, {3+segsh}"); A(f"s_add_u32 {sT2}, {sT2}, {ACC}")
    A(f"v_lshl_add_u32 v11, v3, {segsh}, {sT2}")
    A(f"v_lshl_add_u32 v{AH2}, v2, 2, v11")
    A(f"s_lshl_b32 {sT1}, {W_}, 10")
    if ox4:
        A("v_lshl_add_u32 v13, v13, 1, v15")
        A("v_lshl_add_u32 v13, v3, 4, v13")
        A(f"v_lshl_add_u32 v{ALW}, v13, 4, {sT1}")
    else:
        A(f"v_lshl_add_u32 v{ALW}, v0, 4, {sT1}")
    A(f"s_lshl_b32 {sT0}, {W_}, 8")
    A(f"v_lshl_add_u32 v{AIN2}, v0, 2, {sT0}")
    A(f"s_lshl_b32 {sT0}, {S_}, 7"); A(f"s_add_u32 {sT0}, {sT0}, {sT1}")
    A(f"v_lshl_add_u32 v{AOUT}, v0, 1, {sT0}")
    A(f"global_load_ushort v{XV}, v{AOUT}, {sX}")
    A("s_mov_b32 s54, 0xaaaaaaaa"); A("s_mov_b32 s55, 0xaaaaaaaa")
    for r in range(8): A(f"v_mov_b32 v{WD+r}, 0")
    A(f"s_movk_i32 {sT0}, {0x4000 if ox4 else 0x2000}")
    A(f"s_cmp_eq_u32 {sNOA}, 0xc1")
    if wdfirst:
        A("s_cbranch_scc1 L_nowd0")
        for jj in range(4):
            A(f"global_load_dwordx2 {vr(WD+2*jj,2)}, v{AD}, {sWD} offset:{1024*jj} {ntw}")
        A("L_nowd0:")
        A("s_cmp_eq_u32 0, 0")
    stamp(8)
    A("s_barrier")
    vm = VM(A)
    stl = f"global_load_dwordx4 {vr(STT,4)}, v{AS}, {sWS} sc1"
    h1l = [f"global_load_dwordx4 {vr(OA+4*sh,4)}, v{AH1}, {sWS} offset:{256*sh} sc1" for sh in range(2)]
    A(stl); vm.issue("st")
    A("s_cbranch_scc1 L_nowd")
    if ox4:
        for i in range(2):
            A(f"global_load_dwordx4 {vr(WD+4*i,4)}, v{AD}, {sWD} offset:{2048*i} {ntw}")
        A("L_nowd:")
        for i in range(4):
            A(f"global_load_dwordx4 {vr(WO+4*i,4)}, v{AO}, {sWO} {ntw}"); vm.issue(("wo", 2*i+1))
            if i < 3: A(f"v_add_u32 v{AO}, {sT0}, v{AO}")
    else:
      for jj in range(4):
        A(f"global_load_dwordx2 {vr(WD+2*jj,2)}, v{AD}, {sWD} offset:{1024*jj} {ntw}")
      A("L_nowd:")
      for jj in range(8):
        A(f"global_load_dwordx2 {vr(WO+2*jj,2)}, v{AO}, {sWO} {ntw}"); vm.issue(("wo", jj))
        if jj < 7: A(f"v_add_u32 v{AO}, {sT0}, v{AO}")
    stamp(9)
    A("s_barrier")
    vm.wait("st")
    poll([stl], range(STT, STT+4), 11, first_issued=True)
    m0, l0, m1, l1 = STT, STT+1, STT+2, STT+3
    A(f"v_max_f32 v10, v{m0}, v{m1}")
    def wdperm(e):
        if ox4:
            if e < 2: x4frag(WD+4*e, 172, lambda q: BD+2*q+e)
            return
        for r in range(2):
            A(f"v_perm_b32 v{BD+2*e+r}, v{WD+2*(2*r+1)+(e>>1)}, v{WD+2*(2*r)+(e>>1)}, {sSELHI if e&1 else sSELLO}")
    wdperm(0)
    A(f"v_max_f32_dpp v10, v10, v10 quad_perm:[1,0,3,2] {DPPF}")
    wdperm(1)
    A(f"v_max_f32_dpp v11, v10, v10 quad_perm:[2,3,0,1] {DPPF}")
    wdperm(2)
    A(f"v_max_f32_dpp v11, v11, v11 row_ror:4 {DPPF}")
    wdperm(3)
    A(f"v_max_f32_dpp v11, v11, v11 row_ror:8 {DPPF}")
    A(f"v_sub_f32 v{m0}, v{m0}, v11"); A(f"v_sub_f32 v{m1}, v{m1}, v11"); A("v_sub_f32 v10, v10, v11")
    A(f"v_mul_f32 v{m0}, {sL2E}, v{m0}"); A(f"v_mul_f32 v{m1}, {sL2E}, v{m1}"); A(f"v_mul_f32 v10, {sL2E}, v10")
    A(f"v_exp_f32 v{m0}, v{m0}"); A(f"v_exp_f32 v{m1}, v{m1}"); A("v_exp_f32 v10, v10")
    A(f"v_mul_f32 v12, v{m0}, v{l0}")
    A(f"v_fmac_f32 v12, v{m1}, v{l1}")
    def dhm(e): A(f"v_mfma_f32_16x16x16_bf16 {vr(DH+4*e,4)}, {vr(HF,2)}, {vr(BD+2*e,2)}, 0")
    dhm(0)
    A(f"v_add_f32_dpp v12, v12, v12 quad_perm:[1,0,3,2] {DPPF}")
    dhm(1)
    A(f"v_add_f32_dpp v12, v12, v12 quad_perm:[2,3,0,1] {DPPF}")
    dhm(2)
    A(f"v_add_f32_dpp v12, v12, v12 row_ror:4 {DPPF}")
    dhm(3)
    A(f"v_add_f32_dpp v12, v12, v12 row_ror:8 {DPPF}")
    A("v_rcp_f32 v12, v12")
    A("v_mul_f32 v10, v10, v12")
    for s in range(8): A(f"v_mov_b32_dpp v{WT+s}, v10 row_newbcast:{2*s} {DPPF}")
    stamp(10)
    def woperm(r):
        if ox4: x4frag(WO+4*r, 172, lambda e: BO+4*e+r)
        else:
            for e in range(4):
                A(f"v_perm_b32 v{BO+4*e+r}, v{WO+2*(2*r+1)+(e>>1)}, v{WO+2*(2*r)+(e>>1)}, {sSELHI if e&1 else sSELLO}")
    h1at = {0: 3, 1: 1, 2: -1, 3: 2}[h1early]
    if h1at < 0:
        for l in h1l: A(l); vm.issue("h1")
    for r in range(4):
        vm.wait(("wo", 2*r+1))
        if r == h1at:
            for l in h1l: A(l); vm.issue("h1")
        woperm(r)
    stamp(11)
    if not h1pipe:
        vm.wait_all()
        poll(h1l, range(OA, OA+8), 11, first_issued=True)
    else:
        OB = 176
        h1b = [f"global_load_dwordx4 {vr(OB+4*sh,4)}, v{AH1}, {sWS} offset:{256*sh} sc1" for sh in range(2)]
        A(f"s_mov_b32 {sSPIN}, {SPIN}")
        for l in h1b: A(l)
        A("s_mov_b64 s[58:59], -1"); A("s_mov_b64 s[60:61], -1")
        A("L_hp:")
        A("s_mov_b64 exec, s[58:59]")
        A("s_waitcnt vmcnt(2)")
        max_tree_u32(11, range(OA, OA+8))
        A("v_cmp_eq_u32 vcc, -1, v11")
        A("s_cbranch_vccz L_hpa")
        A("s_mov_b64 exec, vcc")
        for l in h1l: A(l)
        A("s_mov_b64 s[58:59], vcc")
        A("s_mov_b64 exec, s[60:61]")
        A("s_waitcnt vmcnt(2)")
        max_tree_u32(11, range(OB, OB+8))
        A("v_cmp_eq_u32 vcc, -1, v11")
        A("s_cbranch_vccz L_hpb")
        A("s_mov_b64 exec, vcc")
        for l in h1b: A(l)
        A("s_mov_b64 s[60:61], vcc")
        A(f"s_sub_u32 {sSPIN}, {sSPIN}, 1")
        A("s_cbranch_scc0 L_hp")
        A("L_hpb:")
        A("s_mov_b64 exec, -1")
        for sh in range(2):
            for e in range(4):
                A(f"v_mfma_f32_16x16x32_bf16 {vr(DO+16*sh+4*e,4)}, {vr(OB+4*sh,4)}, {vr(BO+4*e,4)}, 0")
        A("s_nop 0")
        A("s_branch L_hpf")
        A("L_hpa:")
        A("s_mov_b64 exec, -1")
    stamp(12)
    def om(sh, e): A(f"v_mfma_f32_16x16x32_bf16 {vr(DO+16*sh+4*e,4)}, {vr(OA+4*sh,4)}, {vr(BO+4*e,4)}, 0")
    def of(sh, e, hh): A(f"v_pk_fma_f32 {vr(DH+4*e,2)}, {vr(DO+16*sh+4*e+2*hh,2)}, {vr(WT+4*sh+2*hh,2)}, {vr(DH+4*e,2)}")
    if h1pipe:
        for sh in range(2):
            for e in range(4): om(sh, e)
        A("s_nop 0")
        A("L_hpf:")
        for sh in range(2):
            for hh in range(2):
                for e in range(4): of(sh, e, hh)
        for e in range(4): A(f"v_add_f32 v{STT+e}, v{DH+4*e}, v{DH+4*e+1}")
    elif sched:
        for e in range(4): om(0, e)
        for e in range(4):
            om(1, e); of(0, e, 0); of(0, e, 1)
        for e in range(4):
            of(1, e, 0); of(1, e, 1)
            if e: A(f"v_add_f32 v{STT+e-1}, v{DH+4*(e-1)}, v{DH+4*(e-1)+1}")
        A(f"v_add_f32 v{STT+3}, v{DH+12}, v{DH+13}")
    else:
        for sh in range(2):
            for e in range(4): om(sh, e)
        for sh in range(2):
            for hh in range(2):
                for e in range(4): of(sh, e, hh)
        for e in range(4): A(f"v_add_f32 v{STT+e}, v{DH+4*e}, v{DH+4*e+1}")
    A(f"ds_write_b128 v{ALW}, {vr(STT,4)} offset:{L_PA}")
    A("s_waitcnt lgkmcnt(0)")
    A("s_barrier")
    A(f"ds_read2st64_b32 {vr(DO,2)}, v{AIN2} offset0:0 offset1:4")
    A(f"ds_read2st64_b32 {vr(DO+2,2)}, v{AIN2} offset0:8 offset1:12")
    A(f"v_lshlrev_b32 v{XV}, 16, v{XV}")
    A("s_waitcnt lgkmcnt(0)")
    A(f"v_pk_add_f32 {vr(DO,2)}, {vr(DO,2)}, {vr(DO+2,2)}")
    A(f"v_add_f32 v{DO}, v{DO}, v{DO+1}")
    A(f"v_cndmask_b32 v{STT}, v{DO}, 1.0, s[54:55]")
    A(f"v_cndmask_b32 v{STT+1}, 1.0, v{DO}, s[54:55]")
    A(f"global_atomic_add_f32 v{STT+2}, v{AH2}, v{STT}, {sWS} sc0 sc1")
    A(f"global_atomic_add_f32 v{STT+3}, v{AH2}, v{STT+1}, {sWS} offset:{4 << segsh} sc0 sc1")
    stamp(13)
    A(f"v_add_f32 v{XV}, v{XV}, v{DO}")
    A(f"s_mov_b32 {sT0}, 0x41f80000")
    A("s_waitcnt vmcnt(1)")
    A(f"v_cmp_eq_f32 vcc, {sT0}, v{STT+2}")
    A("s_and_b64 vcc, vcc, s[54:55]")
    A("s_lshr_b64 s[58:59], vcc, 1")
    A("s_waitcnt vmcnt(0)")
    stamp(5)
    A(f"v_cmp_eq_f32 vcc, {sT0}, v{STT+3}")
    A(f"v_cndmask_b32 v{STT+2}, v{STT+2}, v{STT+3}, s[54:55]")
    A("s_andn2_b64 vcc, vcc, s[54:55]")
    A(f"v_add_f32 v{XV}, v{XV}, v{STT+2}")
    A("s_lshl_b64 vcc, vcc, 1")
    A(f"v_cvt_pk_bf16_f32 v{XV}, v{XV}, v{XV}")
    LF = "L_fin" if (diag or probe >= 0) else "L_svcend"
    A("s_or_b64 exec, vcc, s[58:59]")
    A(f"s_cbranch_execz {LF}")
    A(f"global_store_short v{AOUT}, v{XV}, {sOUT}")
    A(f"s_or_b32 {sT0}, {S_}, {W_}"); A(f"s_cbranch_scc1 {LF}")
    A("s_bitcmp1_b32 s58, 0"); A(f"s_cbranch_scc0 {LF}")
    A("s_mov_b64 exec, 0xffffffff")
    A(f"s_mov_b32 {sT0}, {EPOCH}"); A(f"v_lshl_add_u32 v10, v0, 2, {sT0}"); A(f"v_mov_b32 v11, {sTAG}")
    A(f"global_store_dword v10, v11, {sWS}")
    if LF == "L_fin": A("s_branch L_fin")
    else: A("L_svcend:"); A("s_endpgm")

    A("L_stream:")
    vm = VM(A)
    KR, VF, S, Q, QD, O, P, TM = 16, 144, 192, 200, 204, 236, 244, 248
    def kreg(i): return KR + 4*i
    def vreg(i): return VF + 4*i if i < nVf else KR + 4*(i - nVf)
    AT = [KR + 4*(32 - nVf), KR + 4*(32 - nVf) + 16]
    assert nVf >= 8 and nVf <= 12
    A(f"s_sub_u32 {W_}, {W_}, 4")
    A(f"s_lshl_b32 {sT0}, {B_}, 3"); A(f"s_add_u32 {sT0}, {sT0}, {XX}"); A(f"s_lshl_b32 {sT0}, {sT0}, 22")
    A(f"s_lshl_b32 {sT1}, {S_}, 17"); A(f"s_add_u32 {sT0}, {sT0}, {sT1}"); A(f"s_add_u32 {sT0}, {sT0}, {12288*256}")
    A(f"s_lshl_b32 {sT1}, {W_}, 10")
    if swz == "xorj":
        A(f"s_lshl_b32 {sT2}, {J_}, 12"); A(f"s_add_u32 {sT1}, {sT1}, {sT2}")
    elif swz == "xor7":
        A(f"s_add_u32 {sT2}, {J_}, {XX}"); A(f"s_and_b32 {sT2}, {sT2}, 7"); A(f"s_lshl_b32 {sT2}, {sT2}, 12"); A(f"s_add_u32 {sT1}, {sT1}, {sT2}")
    A(f"v_lshl_add_u32 v6, v0, 4, {sT1}")
    A(f"v_lshl_add_u32 v7, v5, 4, {sT1}")
    A("v_lshl_add_u32 v7, v4, 8, v7")
    A("v_lshl_add_u32 v7, v3, 6, v7")
    A("s_waitcnt lgkmcnt(0)")
    A(f"s_add_u32 s10, s10, {sT0}"); A("s_addc_u32 s11, s11, 0")
    A(f"s_add_u32 s12, s12, {sT0}"); A("s_addc_u32 s13, s13, 0")
    stamp(1)
    if tlb:
        A("s_mov_b64 exec, 1")
        A(f"s_cmp_lg_u32 {W_}, 0"); A("s_cbranch_scc1 L_notlb")
        A(f"s_lshl_b32 {sT0}, {XX}, 19"); A(f"s_lshl_b32 {sT1}, {J_}, 14"); A(f"s_add_u32 {sT0}, {sT0}, {sT1}"); A(f"v_mov_b32 v8, {sT0}")
        A(f"s_mul_i32 {sT0}, {XX}, {224*1024}"); A(f"s_mul_i32 {sT1}, {J_}, 7168"); A(f"s_add_u32 {sT0}, {sT0}, {sT1}"); A(f"v_mov_b32 v9, {sT0}")
        A(f"s_lshl_b32 {sT0}, s2, 7"); A(f"s_add_u32 {sT0}, {sT0}, 0x180000"); A(f"v_mov_b32 v10, {sT0}")
        A(f"global_load_dword v252, v6, {sV} {nt}")
        A(f"global_load_dword v253, v8, {sWO} {nt}")
        A(f"global_load_dword v254, v9, {sWD} {nt}")
        A(f"global_load_dword v255, v10, {sWS} {nt}")
        A("L_notlb:")
        A("s_mov_b64 exec, -1")
    nld = [0]
    def load(which, i):
        t = 8 + (nld[0] & 1); nld[0] += 1
        src, base, r = (7, sK, kreg(i)) if which == "K" else (6, sV, vreg(i))
        if i == 0: t = src
        else: A(f"v_xor_b32 v{t}, {4096*i:#x}, v{src}")
        A(f"global_load_dwordx4 {vr(r,4)}, v{t}, {base} {nt}"); vm.issue((which, i))
    for i in range(nB0): load("K", i)
    stamp(4)
    A("s_barrier")
    stamp(5)
    for i in range(nB0, 32): load("K", i)
    for i in range(nVf): load("V", i)
    consts()
    A("v_lshlrev_b32 v10, 8, v5")
    A("v_lshl_add_u32 v10, v3, 6, v10")
    A("v_lshl_add_u32 v10, v4, 4, v10")
    A(f"v_mov_b32 v11, {L_MODE}")
    stamp(6)
    A("s_barrier")
    stamp(7)
    A(f"ds_read_b128 {vr(Q,4)}, v10 offset:{L_Q}")
    A("ds_read_b32 v11, v11")
    A("s_waitcnt lgkmcnt(0)")
    A(f"v_readfirstlane_b32 {sMODE}, v11")
    def extract(i):
        d = QD + 4*(i % 8); s = S + (i & 1) + 2*(i >> 3); t = (i >> 1) & 3
        ops = []; first = True
        for v in range(4):
            if v == t: continue
            n = 4*((t - v) % 4)
            src1 = d + t if first else s
            ops.append(f"v_add_f32_dpp v{s}, v{d+v}, v{src1} row_ror:{n} row_mask:0xf bank_mask:{1<<t:#x}")
            first = False
        return ops
    def qk(i):
        vm.wait(("K", i))
        A(f"v_mfma_f32_16x16x32_bf16 {vr(QD+4*(i%8),4)}, {vr(kreg(i),4)}, {vr(Q,4)}, 0")
    nv = nVf
    if "k" not in skip:
      for i in range(4): qk(i)
      for i in range(0, 32, 2):
        a, b = extract(i), extract(i+1)
        A(a[0]); A(b[0])
        if i + 4 < 32: qk(i+4)
        A(a[1]); A(b[1])
        if i + 5 < 32: qk(i+5)
        A(a[2]); A(b[2])
        if qkint and (i // 2 + 1) % qkint == 0 and i < 30: load("V", nv); nv += 1
    stamp(2)
    for _ in range(qkload): load("V", nv); nv += 1
    stamp(3)
    A(f"s_mov_b32 s46, {SCALE:#x}"); A(f"s_mov_b32 s47, {SCALE:#x}")
    for i in range(4): A(f"v_cvt_pk_bf16_f32 v{P+i}, v{S+2*i}, v{S+2*i+1}")
    for i in range(4): unpack(S+2*i, S+2*i+1, P+i)
    for i in range(4): A(f"v_pk_mul_f32 {vr(S+2*i,2)}, {vr(S+2*i,2)}, {sPK}")
    for i in range(4): A(f"v_cvt_pk_bf16_f32 v{P+i}, v{S+2*i}, v{S+2*i+1}")
    for i in range(4): unpack(S+2*i, S+2*i+1, P+i)
    M_, Lr = TM, TM+1
    A(f"v_max3_f32 v{M_}, v{S}, v{S+1}, v{S+2}")
    A(f"v_max3_f32 v{TM+2}, v{S+3}, v{S+4}, v{S+5}")
    A(f"v_max3_f32 v{M_}, v{M_}, v{S+6}, v{S+7}")
    A(f"v_max_f32 v{M_}, v{M_}, v{TM+2}")
    A(f"v_max_f32_dpp v{M_}, v{M_}, v{M_} row_ror:4 {DPPF}")
    A(f"v_max_f32_dpp v{M_}, v{M_}, v{M_} row_ror:8 {DPPF}")
    rows_reduce("v_max_f32", M_, TM+2)
    for _ in range(smint): load("V", nv); nv += 1
    A(f"s_mov_b32 s46, {LOG2E:#x}"); A(f"s_mov_b32 s47, {LOG2E:#x}")
    for i in range(4):
        A(f"v_pk_add_f32 {vr(S+2*i,2)}, {vr(S+2*i,2)}, {vr(M_,2)} op_sel_hi:[1,0] neg_lo:[0,1] neg_hi:[0,1]")
    for i in range(4): A(f"v_pk_mul_f32 {vr(S+2*i,2)}, {vr(S+2*i,2)}, {sPK}")
    for i in range(8): A(f"v_exp_f32 v{S+i}, v{S+i}")
    for i in range(4): A(f"v_cvt_pk_bf16_f32 v{P+i}, v{S+2*i}, v{S+2*i+1}")
    A(f"v_pk_add_f32 {vr(S,2)}, {vr(S,2)}, {vr(S+2,2)}")
    A(f"v_pk_add_f32 {vr(S+4,2)}, {vr(S+4,2)}, {vr(S+6,2)}")
    A(f"v_pk_add_f32 {vr(S,2)}, {vr(S,2)}, {vr(S+4,2)}")
    A(f"v_add_f32 v{Lr}, v{S}, v{S+1}")
    A(f"v_add_f32_dpp v{Lr}, v{Lr}, v{Lr} row_ror:4 {DPPF}")
    A(f"v_add_f32_dpp v{Lr}, v{Lr}, v{Lr} row_ror:8 {DPPF}")
    rows_reduce("v_add_f32", Lr, TM+2)
    A(f"s_lshl_b32 {sT0}, {XX}, 12"); A(f"s_lshl_b32 {sT1}, {J_}, 5"); A(f"s_add_u32 {sT0}, {sT0}, {sT1}")
    A(f"s_lshl_b32 {sT1}, {W_}, 3"); A(f"s_add_u32 {sT0}, {sT0}, {sT1}"); A(f"s_add_u32 {sT0}, {sT0}, {ST}")
    A(f"v_lshl_add_u32 v10, v5, 10, {sT0}")
    A(f"s_lshl_b32 {sT1}, {W_}, 2")
    A(f"v_lshl_add_u32 v11, v5, 4, {sT1}")
    A(f"v_min_u32 v{M_}, -2, v{M_}"); A(f"v_min_u32 v{Lr}, -2, v{Lr}")
    A(f"s_cmp_eq_u32 {sMODE}, 0")
    A("s_mov_b64 exec, 0xf")
    if "s" not in skip:
        mstore([f"global_store_dwordx2 v10, {vr(M_,2)}, {sWS}"]); vm.issue("stats", store=True)
    A(f"ds_write_b32 v11, v{M_} offset:{L_M}")
    A("s_mov_b64 exec, -1")
    for _ in range(smload): load("V", nv); nv += 1
    stamp(8)
    for r in range(32): A(f"v_mov_b32 v{AT[0]+r}, 0")
    def build_at(blk):
        for t in range(4):
            for r in range(4):
                n = 4*((t - r) % 4)
                ctl = f"row_ror:{n}" if n else "quad_perm:[0,1,2,3]"
                A(f"v_mov_b32_dpp v{AT[blk&1]+4*t+r}, v{P+blk} {ctl} row_mask:0xf bank_mask:{1<<t:#x}")
    def perm(blk, r, e):
        A(f"v_perm_b32 v{QD+4*e+r}, v{vreg(8*blk+2*r+1)+(e>>1)}, v{vreg(8*blk+2*r)+(e>>1)}, {sSELHI if e&1 else sSELLO}")
    def pvm(blk, e):
        c = "0" if (blk == 0 and (e & 3) == 0) else vr(O+4*(e>>2),4)
        A(f"v_mfma_f32_16x16x32_bf16 {vr(O+4*(e>>2),4)}, {vr(AT[blk&1]+4*(e&3),4)}, {vr(QD+4*e,4)}, {c}")
    def pv(blk):
        for r in range(3):
            vm.wait(("V", 8*blk+2*r+1))
            for e in range(8): perm(blk, r, e)
        vm.wait(("V", 8*blk+7))
        perm(blk, 3, 0); perm(blk, 3, 1); perm(blk, 3, 2)
        for e in range(8):
            pvm(blk, e)
            if e + 3 < 8: perm(blk, 3, e+3)
    if smint: load("V", nv); nv += 1
    build_at(0)
    if smint: load("V", nv); nv += 1
    build_at(1)
    while nv < min(pv0, 32): load("V", nv); nv += 1
    if pv0 <= 32: pv(0); build_at(2)
    while nv < min(pv1, 32): load("V", nv); nv += 1
    if pv1 <= 32: pv(1); build_at(3)
    while nv < 32: load("V", nv); nv += 1
    A("s_waitcnt lgkmcnt(0)")
    stamp(9)
    A("s_barrier")
    F = TM + 4
    A(f"s_lshl_b32 {sT0}, {W_}, 4")
    A(f"v_mov_b32 v10, {sT0}")
    A(f"ds_read_b128 {vr(F,4)}, v10 offset:{L_M}")
    A(f"s_lshl_b32 {sT0}, {W_}, 11")
    A(f"v_lshl_add_u32 v12, v0, 2, {sT0}")
    A(f"s_lshl_b32 {sT0}, {W_}, 9")
    A(f"v_lshl_add_u32 v13, v0, 3, {sT0}")
    A(f"s_lshl_b32 {sT0}, {XX}, 15"); A(f"s_lshl_b32 {sT1}, {W_}, 13"); A(f"s_add_u32 {sT0}, {sT0}, {sT1}")
    A(f"s_lshl_b32 {sT1}, {J_}, 6"); A(f"s_add_u32 {sT0}, {sT0}, {sT1}"); A(f"s_add_u32 {sT0}, {sT0}, {IN1}")
    A(f"v_lshl_add_u32 v14, v3, 11, {sT0}")
    A("v_lshl_add_u32 v14, v2, 2, v14")
    A("s_waitcnt lgkmcnt(0)")
    A(f"v_max3_f32 v10, v{F}, v{F+1}, v{F+2}")
    A(f"v_max_f32 v10, v10, v{F+3}")
    for i in range(4): A(f"v_sub_f32 v{F+i}, v{F+i}, v10")
    for i in range(4): A(f"v_mul_f32 v{F+i}, {sL2E}, v{F+i}")
    for i in range(4): A(f"v_exp_f32 v{F+i}, v{F+i}")
    if pv0 > 32: pv(0); build_at(2)
    if pv1 > 32: pv(1); build_at(3)
    pv(2)
    stamp(10)
    pv(3)
    for h in range(4):
        A(f"ds_write2st64_b32 v12, v{O+h}, v{O+4+h} offset0:{L_O//256+2*h} offset1:{L_O//256+2*h+1}")
    A("s_waitcnt lgkmcnt(0)")
    stamp(11)
    A("s_barrier")
    R = QD
    for w in range(4): A(f"ds_read_b64 {vr(R+2*w,2)}, v13 offset:{L_O+2048*w}")
    A(f"s_cmp_eq_u32 {sMODE}, 0")
    A("s_waitcnt lgkmcnt(0)")
    A(f"v_pk_mul_f32 {vr(R,2)}, {vr(R,2)}, {vr(F,2)} op_sel_hi:[1,0]")
    A(f"v_pk_fma_f32 {vr(R,2)}, {vr(R+2,2)}, {vr(F,2)}, {vr(R,2)} op_sel:[0,1,0] op_sel_hi:[1,1,1]")
    A(f"v_pk_fma_f32 {vr(R,2)}, {vr(R+4,2)}, {vr(F+2,2)}, {vr(R,2)} op_sel_hi:[1,0,1]")
    A(f"v_pk_fma_f32 {vr(R,2)}, {vr(R+6,2)}, {vr(F+2,2)}, {vr(R,2)} op_sel:[0,1,0] op_sel_hi:[1,1,1]")
    A(f"v_cvt_pk_bf16_f32 v{R}, v{R}, v{R+1}")
    A(f"v_min_u32 v{R}, -2, v{R}")
    if h1sc1: A(f"global_store_dword v14, v{R}, {sWS} sc1")
    else: mstore([f"global_store_dword v14, v{R}, {sWS}"])
    stamp(12)
    if diag:
        A(f"s_cmp_eq_u32 {sMODE}, 0"); A("s_cbranch_scc1 L_dm"); stamp(13); A("L_dm:")
    A("s_barrier")
    if wbl2 & 2:
        A(f"s_lshl_b32 {sT1}, {J_}, 3"); A(f"s_add_u32 {sT1}, {sT1}, {W_}"); A(f"s_cmp_lg_u32 {sT1}, 0"); A("s_cbranch_scc1 L_fin")
        A("buffer_wbl2 sc1")
    A("L_fin:")
    if probe >= 0:
        stamp(14)
        A("s_waitcnt vmcnt(0)")
        stamp(15)
        A("s_waitcnt lgkmcnt(0)")
        A("v_readfirstlane_b32 s40, v1")
        if pwave >= 0:
            A(f"s_cmp_lg_u32 s40, {pwave}"); A("s_cbranch_scc1 L_end")
        if pwg >= 0:
            A(f"s_cmp_lg_u32 s2, {pwg}"); A("s_cbranch_scc1 L_end")
        A("s_sub_u32 s41, s66, s64"); A(f"s_mul_i32 s41, s41, {pmul}"); A("s_add_u32 s41, s41, 4000")
        if pxcc:
            A("s_getreg_b32 s42, hwreg(HW_REG_XCC_ID, 0, 4)"); A(f"s_and_b32 s42, s42, {pxcc}"); A("s_mul_i32 s42, s42, 1000"); A("s_add_u32 s41, s41, s42")
        A("L_spin:")
        A("s_memrealtime s[68:69]"); A("s_waitcnt lgkmcnt(0)")
        A("s_sub_u32 s42, s68, s64"); A("s_cmp_lt_u32 s42, s41"); A("s_cbranch_scc1 L_spin")
    if diag:
        stamp(14)
        A("s_waitcnt vmcnt(0)")
        stamp(15)
        A("s_waitcnt lgkmcnt(0)")
        A("L_dl:"); A("s_sleep 16"); A("s_memrealtime s[60:61]"); A("s_waitcnt lgkmcnt(0)"); A("s_sub_u32 s60, s60, s64"); A("s_cmp_lt_u32 s60, 2200"); A("s_cbranch_scc1 L_dl")
        A("s_mov_b64 exec, 1")
        A("v_readfirstlane_b32 s40, v1")
        A("s_lshl_b32 s41, s2, 3"); A("s_add_u32 s40, s40, s41"); A("s_lshl_b32 s40, s40, 8"); A("s_add_u32 s40, s40, 0x10000000")
        A("v_mov_b32 v2, s40")
        for k in range(16):
            A(f"v_mov_b32 v4, s{64+2*k}"); A(f"v_mov_b32 v5, s{65+2*k}")
            A(f"global_store_dwordx2 v2, v[4:5], {sWS} offset:{8*k}")
            A("s_nop 1")
    A("L_end:")
    A("s_endpgm")
    if padT:
        A("L_tab:")
        for wg in range(256):
            x, j = wg & 7, wg >> 3
            a_ = PERM[j]
            if a_ < 16: c = 512 if (a_ >> 1) == 3 else 256
            elif (x & 1) and a_ >= 28: c = 0
            else: c = 384 if BLK[x][(a_ >> 2) & 3] % 4 == 3 else 256
            o = 128 if ((x & 1) and j >= 24) else 192
            if (x & 1) and j >= 24: c -= 72
            if (j & 7) == 3: o *= 2
            if j == 31: c += 90
            T = padTo if (x & 1) and padTo else padT
            A(f".long {max(0, round((T - c - o) / 36))}")
    A('.section .rodata,"a"'); A(".p2align 6"); A(f".amdhsa_kernel {KNAME}")
    A("  .amdhsa_next_free_vgpr 256"); A("  .amdhsa_next_free_sgpr 102"); A("  .amdhsa_accum_offset 256")
    A("  .amdhsa_group_segment_fixed_size 0"); A("  .amdhsa_kernarg_size 96"); A("  .amdhsa_user_sgpr_count 2")
    A("  .amdhsa_user_sgpr_kernarg_segment_ptr 1"); A("  .amdhsa_system_sgpr_workgroup_id_x 1")
    A("  .amdhsa_float_denorm_mode_32 3")
    A(".end_amdhsa_kernel")
    lines = []
    for l in L: lines.extend(l.split("\n"))
    lines = hazard_pass(lines)
    return "\n".join(lines) + "\n"

if __name__ == "__main__":
    ap = argparse.ArgumentParser()
    ap.add_argument("out")
    ap.add_argument("--opt", nargs="*", default=[])
    a = ap.parse_args()
    kw = {}
    for o in a.opt:
        k, v = o.split("=")
        try: v = int(v)
        except ValueError: pass
        kw[k] = v
    open(a.out, "w").write(gen(**kw))
```

```python
import sys, argparse
sys.path.insert(0, "gen")
from asmlib import *

KNAME = "parallel_sum__sliding_block_cached__swiglu_ffn__decode_kernel"
QP    = 0x000000
GP    = 0x040000
CLR   = 0x080000
EPOCH = 0x081000
ST    = 0x088000
IN1   = 0x090000
ZF    = 0x082000
ACC   = 0x100000
IN2   = 0x100000
L_PA, L_O, L_Q, L_M, L_MODE, L_CNT, L_X = 0, 4096, 12288, 13312, 13376, 13380, 4096
LDS_BYTES = 13440
LOG2E = 0x3fb8aa3b
SCALE = 0x3db504f3
EPS = 0x3727c5ac
SPIN = 1 << 22

HEADER = open("parallel_sum__sliding_block_cached__swiglu_ffn__decode.s.ref").read().split("; Override launch")[0]

def gen(diag=False, nt="nt", ntw="nt", nB0=3, nVf=12, swz="xorj", fast=1, pollsleep=0, prefetch=1, align=1,
        skip="", qkload=2, smload=2, pv0=19, pv1=27, walk=0, ldsync=1, h1early=1, tlb=0, in2touch=0, pubtouch=0, segsh=8, outtouch=0, remap=-1, sched=1, ox4=0, ax4=0, h1pipe=0, defer=8, head2=1, zearly=0, h1sc1=0, wdfirst=0, mixmode=0, pert1=0, pertall=0, qkint=0, smint=0, padT=0, padTo=0, cmap=1, nohello=0, pubsc1=0, outsc1=0, wbl2=0, pad2=0, cw=0, h2sleep=0, h2pre=0, pubdelay=0, condelay=0, pxcc=0, probe=-1, pwave=-1, pwg=-1, pmul=4):
    L = []
    A = L.append
    def stamp(k):
        if probe >= 0:
            if k == 0: A("s_memrealtime s[64:65]"); A("s_memrealtime s[66:67]")
            elif k == probe: A("s_memrealtime s[66:67]")
        if diag:
            A(f"s_memrealtime s[{64+2*k}:{65+2*k}]")
            if k == 1:
                for q in range(2, 16): A(f"s_mov_b64 s[{64+2*q}:{65+2*q}], 0")
    uid = [0]
    def lab(p):
        uid[0] += 1
        return f"L_{p}_{uid[0]}"
    DPPF = "row_mask:0xf bank_mask:0xf"
    sX, sK, sV, sWQ, sWO, sG, sU, sWD, sOUT, sDBG, sWS = (f"s[{a}:{a+1}]" for a in (8,10,12,14,16,20,22,24,26,28,30))
    W_, XX, J_, B_, S_ = "s3", "s4", "s5", "s6", "s7"
    sPITCH, sCB, sKH, sFB, sHB = "s32", "s33", "s34", "s35", "s36"
    sSELLO, sSELHI, sHI = "s37", "s38", "s39"
    sT0, sT1, sT2, sT3 = "s40", "s41", "s42", "s43"
    sSPIN = "s44"; sMODE = "s45"
    sPK = "s[46:47]"
    sSAVE = "s[48:49]"
    sTB = "s[50:51]"
    sRB = "s52"; sL2E = "s53"; sTAG = "s56"; sNOA = "s57"; JA = "s62"
    if remap == 1:
        PERM = [None]*32
        for i, j in enumerate((3, 11, 19, 27)): PERM[j] = 28 + i
        for a, j in zip((6, 7, 16, 17, 18, 19), (24, 25, 26, 28, 29, 30)): PERM[j] = a
        rest = [a for a in range(32) if a not in PERM]
        for j in range(32):
            if PERM[j] is None: PERM[j] = rest.pop(0)
        heavy = [3, 7, 11, 15, 19, 23, 27]; norm = [b for b in range(28) if b not in heavy]
        BLK = []
        for x in range(8):
            row = [] if x == 0 else [heavy.pop(0)]
            while len(row) < (3 if x & 1 else 4): row.append(norm.pop(0))
            BLK.append(row + [0]*(4 - len(row)))
    else:
        PERM = list(range(32))
        BLK = [[min(27, ((7*x + 1) >> 1) + u) for u in range(4)] for x in range(8)]

    def unpack(lo, hi, src):
        A(f"v_lshlrev_b32 v{lo}, 16, v{src}")
        A(f"v_and_b32 v{hi}, {sHI}, v{src}")
    def rows_reduce(op, v, t):
        A(f"v_mov_b32 v{t}, v{v}")
        A(f"v_permlane16_swap_b32 v{v}, v{t}")
        A(f"{op} v{v}, v{v}, v{t}")
        A(f"v_mov_b32 v{t}, v{v}")
        A(f"v_permlane32_swap_b32 v{v}, v{t}")
        A(f"{op} v{v}, v{v}, v{t}")
    def max_tree_u32(dst, regs):
        regs = list(regs)
        A(f"v_max3_u32 v{dst}, v{regs[0]}, v{regs[1]}, v{regs[2]}")
        regs = regs[3:]
        while len(regs) >= 2:
            A(f"v_max3_u32 v{dst}, v{dst}, v{regs[0]}, v{regs[1]}"); regs = regs[2:]
        if regs: A(f"v_max_u32 v{dst}, v{dst}, v{regs[0]}")
    def poll(loads, regs, tmp, first_issued=False, tagged=False, sleep=None):
        lp, dn = lab("poll"), lab("pdone")
        def check():
            r = list(regs)
            if tagged:
                if len(r) == 1:
                    A(f"v_cmp_ne_u32 vcc, {sTAG}, v{r[0]}")
                else:
                    A(f"v_xor_b32 v{tmp}, {sTAG}, v{r[0]}")
                    for q in r[1:]: A(f"v_bitop3_b32 v{tmp}, v{q}, {sTAG}, v{tmp} bitop3:0xbe")
                    A(f"v_cmp_ne_u32 vcc, 0, v{tmp}")
            else:
                max_tree_u32(tmp, r)
                A(f"v_cmp_eq_u32 vcc, -1, v{tmp}")
        A(f"s_mov_b32 {sSPIN}, {SPIN}")
        if first_issued:
            chk = lab("pchk"); A(f"s_branch {chk}")
        A(f"{lp}:")
        for l in loads: A(l)
        A("s_waitcnt vmcnt(0)")
        if first_issued: A(f"{chk}:")
        check()
        A(f"s_cbranch_vccz {dn}")
        A("s_mov_b64 exec, vcc")
        if sleep is None: sleep = pollsleep
        if sleep: A(f"s_sleep {sleep}")
        A(f"s_sub_u32 {sSPIN}, {sSPIN}, 1")
        A(f"s_cbranch_scc0 {lp}")
        A(f"{dn}:")
        A("s_mov_b64 exec, -1")
    def mstore(instrs):
        if not fast:
            for i in instrs: A(i + " sc1")
            return
        sl, dn = lab("slow"), lab("sdone")
        A(f"s_cbranch_scc0 {sl}")
        for i in instrs: A(i)
        A(f"s_branch {dn}")
        A(f"{sl}:")
        for i in instrs: A(i + " sc1")
        A(f"{dn}:")
    def x4frag(R, tmp, dst):
        for h in range(2):
            A(f"v_mov_b32_dpp v{tmp+h}, v{R+h} row_ror:8 row_mask:0xf bank_mask:0x3")
        for h in range(2):
            A(f"v_mov_b32_dpp v{R+h}, v{R+2+h} row_ror:8 row_mask:0xf bank_mask:0xc")
        for h in range(2):
            A(f"v_mov_b32_dpp v{R+2+h}, v{tmp+h} quad_perm:[0,1,2,3] row_mask:0xf bank_mask:0x3")
        for e in range(4):
            A(f"v_perm_b32 v{dst(e)}, v{R+2+(e>>1)}, v{R+(e>>1)}, {sSELHI if e&1 else sSELLO}")
    def consts():
        A(f"s_mov_b32 {sHI}, 0xffff0000")
        A(f"s_mov_b32 {sSELLO}, 0x05040100"); A(f"s_mov_b32 {sSELHI}, 0x07060302")
        A(f"s_mov_b32 {sL2E}, {LOG2E:#x}")

    A(HEADER.rstrip())
    A(f"; @launch grid=(256,1,1) block=(512,1,1) lds={LDS_BYTES}")
    A("""; One fused launch, 256 workgroups (one per CU), 8 waves each. x = wg & 7 (kv head), j = wg >> 3.
; Final reduction: returning f32 atomics on {sum, count} pairs; the workgroup that arrives last writes the output.""")
    A('.amdgcn_target "amdgcn-amd-amdhsa--gfx950"')
    A(".text")
    if align:
        A(".p2align 12"); A(f".fill {0xD00//4}, 4, 0xbf810000")
    A(f".globl {KNAME}"); A(".p2align 8"); A(f".type {KNAME},@function"); A(f"{KNAME}:")
    stamp(0)
    if not head2: A("s_cmp_ge_u32 s2, 256"); A("s_cbranch_scc1 L_end")
    A("s_load_dwordx16 s[8:23], s[0:1], 0")
    A("s_load_dwordx8 s[24:31], s[0:1], 64")
    if head2: A("s_cmp_ge_u32 s2, 256"); A("s_cbranch_scc1 L_end")
    A("v_lshrrev_b32 v1, 6, v0")
    A("v_and_b32 v0, 63, v0")
    A(f"v_readfirstlane_b32 {W_}, v1")
    A(f"s_and_b32 {XX}, s2, 7")
    A(f"s_lshr_b32 {J_}, s2, 3")
    A("v_and_b32 v2, 15, v0")
    A("v_lshrrev_b32 v3, 4, v0")
    A("v_bfe_u32 v4, v0, 2, 2")
    A("v_and_b32 v5, 3, v0")
    A(f"s_lshr_b32 {B_}, {J_}, 3"); A(f"s_and_b32 {S_}, {J_}, 7")
    A(f"s_cmp_ge_u32 {W_}, 4"); A("s_cbranch_scc1 L_stream")

    vm = VM(A)
    X, XA, T, U, AF, BF, D = 16, 32, 40, 72, 104, 112, 144
    pk = lambda r: r[0] | r[1] << 8 | r[2] << 16 | r[3] << 24
    if remap == -1:
        A(f"s_mov_b32 {JA}, {J_}")
        A(f"s_mul_i32 {sFB}, {XX}, 7"); A(f"s_add_u32 {sFB}, {sFB}, 1"); A(f"s_lshr_b32 {sFB}, {sFB}, 1")
        A(f"s_mul_i32 {sFB}, {sFB}, 0x01010101"); A(f"s_add_u32 {sFB}, {sFB}, 0x03020100")
    else:
        A(f"s_lshr_b32 m0, {J_}, 2")
        for i in range(8): A(f"s_mov_b32 s{44+i}, {pk(PERM[4*i:4*i+4]):#x}")
        A(f"s_movrels_b32 {JA}, s44")
        A(f"s_mov_b32 m0, {XX}")
        for i in range(8): A(f"s_mov_b32 s{44+i}, {pk(BLK[i]):#x}")
        A(f"s_movrels_b32 {sFB}, s44")
        A(f"s_lshl_b32 {sT0}, {J_}, 3"); A(f"s_lshr_b32 {JA}, {JA}, {sT0}"); A(f"s_and_b32 {JA}, {JA}, 31")
    A(f"s_and_b32 {sKH}, {JA}, 1")
    A(f"s_lshr_b32 {sT0}, {JA}, 1")
    A(f"s_lshl_b32 {sT1}, {XX}, 3"); A(f"s_add_u32 {sT1}, {sT1}, {sT0}")
    A(f"s_lshl_b32 {sT2}, {JA}, 1"); A(f"s_and_b32 {sT2}, {sT2}, 24"); A(f"s_lshr_b32 {sT2}, {sFB}, {sT2}"); A(f"s_and_b32 {sT2}, {sT2}, 31")
    A(f"s_cmp_lt_u32 {JA}, 16")
    A(f"s_cselect_b32 {sCB}, {sT1}, {sT2}")
    A(f"s_movk_i32 {sT3}, 3584")
    A(f"s_cselect_b32 {sPITCH}, 8192, {sT3}")
    A(f"s_lshl_b32 {sT0}, {W_}, 10")
    A(f"v_lshl_add_u32 v6, v0, 4, {sT0}")
    A(f"s_lshl_b32 {sT0}, {sKH}, 2"); A(f"s_add_u32 {sT0}, {sT0}, {W_}"); A(f"s_lshl_b32 {sT0}, {sT0}, 6")
    A(f"v_lshl_add_u32 v7, v3, 4, {sT0}")
    A("v_lshlrev_b32 v8, 1, v7")
    A("v_lshl_add_u32 v8, v4, 10, v8")
    A(f"s_lshl_b32 {sT1}, {sCB}, 7")
    if ax4:
        A("v_and_b32 v9, 7, v0"); A("v_bfe_u32 v13, v0, 3, 1")
        A(f"v_lshl_add_u32 v10, v9, 4, {sT1}")
        A("v_add_u32 v7, v7, v13")
        A("v_lshl_add_u32 v13, v9, 1, v13")
        A(f"v_mad_u32_u24 v9, v7, {sPITCH}, v10")
        A(f"s_lshl_b32 {sPITCH}, {sPITCH}, 1")
        A("v_sub_u32 v13, v13, v2")
        A("v_lshl_add_u32 v7, v13, 4, v6")
    else:
        A(f"v_lshl_add_u32 v9, v2, 3, {sT1}")
        A(f"v_mad_u32_u24 v9, v7, {sPITCH}, v9")
    def zaddr():
        for i in range(4): A(f"v_mov_b32 v{U+i}, 0")
        A(f"s_lshl_b32 {sT0}, {XX}, {5+segsh}"); A(f"s_add_u32 {sT0}, {sT0}, {ACC}")
        A(f"v_lshrrev_b32 v{U+4}, 2, v0")
        A(f"v_lshl_add_u32 v{U+4}, v{U+4}, {segsh}, {sT0}")
        A(f"v_lshl_add_u32 v{U+4}, v5, 4, v{U+4}")
        A(f"v_add_u32 v{U+5}, {16 << segsh}, v{U+4}")
    def zstore():
        A(f"global_store_dwordx4 v{U+4}, {vr(U,4)}, {sWS} sc1")
        A(f"global_store_dwordx4 v{U+5}, {vr(U,4)}, {sWS} sc1")
    if zearly:
        zaddr()
        A(f"s_lshl_b32 s63, {J_}, 2"); A(f"s_add_u32 s63, s63, {W_}")
    A(f"s_getreg_b32 {sHB}, hwreg(HW_REG_XCC_ID, 0, 4)")
    A(f"s_bitset1_b32 {sHB}, 7")
    A(f"s_lshl_b32 {sT2}, {XX}, 5"); A(f"s_add_u32 {sT3}, {sT2}, {J_}")
    A(f"v_mov_b32 v10, {sT3}"); A(f"v_mov_b32 v11, {sHB}")
    A("v_and_b32 v12, 7, v0")
    A(f"v_lshl_add_u32 v12, v12, 2, {sT2}")
    A(f"s_lshl_b32 {sNOA}, {JA}, 3"); A(f"s_or_b32 {sNOA}, {sNOA}, {XX}")
    A(f"s_and_b32 {sNOA}, {sNOA}, 0xe1")
    A(f"s_bitcmp1_b32 {JA}, 1")
    if head2: A("s_mov_b64 exec, 1")
    A("s_waitcnt lgkmcnt(0)")
    if head2:
        A(f"global_store_byte v10, v11, {sDBG}")
        A("s_mov_b64 exec, -1")
        A(f"global_load_dwordx4 {vr(X,4)}, v6, {sX}")
    A(f"s_cselect_b64 {sTB}, {sU}, {sG}")
    A(f"s_cmp_lt_u32 {JA}, 16")
    A(f"s_cselect_b64 {sTB}, {sWQ}, {sTB}")
    if not nohello and not head2: A(f"global_store_byte v10, v11, {sDBG}")
    A(f"s_load_dword {sTAG}, {sWS}, {EPOCH:#x}")
    if zearly:
        A("s_cmp_lg_u32 s63, 2"); A("s_cbranch_scc1 L_noz")
        zstore()
        A("L_noz:")
    if not head2: A(f"global_load_dwordx4 {vr(X,4)}, v6, {sX}")
    vm.issue("x")
    A(f"s_cmp_eq_u32 {sNOA}, 0xe1"); A("s_cbranch_scc1 L_noA")
    if ax4:
        for i in range(8):
            A(f"global_load_dwordx4 {vr(T+4*i,4)}, v9, {sTB} {ntw}"); vm.issue(("t", i))
            if i < 7: A(f"v_add_u32 v9, {sPITCH}, v9")
    else:
      for jj in range(16):
        A(f"global_load_dwordx2 {vr(T+2*jj,2)}, v9, {sTB} {ntw}"); vm.issue(("t", jj))
        if jj < 15: A(f"v_add_u32 v9, {sPITCH}, v9")
    stamp(1)
    consts()
    A(f"v_mov_b32 v15, {L_CNT}"); A("v_mov_b32 v13, 0")
    A("ds_write_b32 v15, v13")
    vm.wait("x")
    stamp(2)
    for i in range(4): unpack(U+2*i, U+2*i+1, X+i)
    def wave_sum(dst):
        A(f"v_pk_add_f32 {vr(XA,2)}, {vr(XA,2)}, {vr(XA+2,2)}")
        A(f"v_add_f32 v{dst}, v{XA}, v{XA+1}")
        A(f"v_add_f32_dpp v{dst}, v{dst}, v{dst} quad_perm:[1,0,3,2] {DPPF}")
        A(f"v_add_f32_dpp v{dst}, v{dst}, v{dst} quad_perm:[2,3,0,1] {DPPF}")
        A(f"v_add_f32_dpp v{dst}, v{dst}, v{dst} row_ror:8 {DPPF}")
        A(f"v_add_f32_dpp v{dst}, v{dst}, v{dst} row_ror:4 {DPPF}")
        rows_reduce("v_add_f32", dst, XA+4)
        A(f"v_mul_f32 v{dst}, 0x3b000000, v{dst}")
    A(f"v_pk_add_f32 {vr(XA,2)}, {vr(U,2)}, {vr(U+2,2)}")
    A(f"v_pk_add_f32 {vr(XA+2,2)}, {vr(U+4,2)}, {vr(U+6,2)}")
    wave_sum(10)
    for i in range(4):
        A(f"v_pk_add_f32 {vr(U+8+2*i,2)}, {vr(U+2*i,2)}, v[10:11] op_sel_hi:[1,0] neg_lo:[0,1] neg_hi:[0,1]")
    A(f"v_pk_mul_f32 {vr(XA,2)}, {vr(U+8,2)}, {vr(U+8,2)}")
    A(f"v_pk_mul_f32 {vr(XA+2,2)}, {vr(U+10,2)}, {vr(U+10,2)}")
    A(f"v_pk_fma_f32 {vr(XA,2)}, {vr(U+12,2)}, {vr(U+12,2)}, {vr(XA,2)}")
    A(f"v_pk_fma_f32 {vr(XA+2,2)}, {vr(U+14,2)}, {vr(U+14,2)}, {vr(XA+2,2)}")
    wave_sum(11)
    A("v_cvt_pk_bf16_f32 v13, v10, v11")
    unpack(10, 11, 13)
    A(f"v_add_f32 v11, {EPS:#x}, v11")
    for i in range(4):
        A(f"v_pk_add_f32 {vr(U+2*i,2)}, {vr(U+2*i,2)}, v[10:11] op_sel_hi:[1,0] neg_lo:[0,1] neg_hi:[0,1]")
    A("v_cvt_pk_bf16_f32 v11, v11, v11")
    A("v_lshlrev_b32 v11, 16, v11")
    A("v_sqrt_f32 v11, v11")
    for i in range(4): A(f"v_cvt_pk_bf16_f32 v{X+i}, v{U+2*i}, v{U+2*i+1}")
    A("v_cvt_pk_bf16_f32 v11, v11, v11")
    A("v_lshlrev_b32 v11, 16, v11")
    A("v_rcp_f32 v10, v11")
    for i in range(4): unpack(U+2*i, U+2*i+1, X+i)
    for i in range(4):
        A(f"v_pk_mul_f32 {vr(U+2*i,2)}, {vr(U+2*i,2)}, v[10:11] op_sel_hi:[1,0]")
    for i in range(4): A(f"v_cvt_pk_bf16_f32 v{X+i}, v{U+2*i}, v{U+2*i+1}")
    A(f"ds_write_b128 v6, {vr(X,4)} offset:{L_X}")
    A("s_waitcnt lgkmcnt(0)")
    stamp(3)
    A("s_barrier")
    A(f"global_load_dword v14, v12, {sDBG} sc1"); vm.issue("mode")
    for i in range(2): A(f"ds_read_b128 {vr(AF+4*i,4)}, v8 offset:{L_X+16*i}")
    A("s_waitcnt lgkmcnt(0)")
    for blk in range(2):
        if ax4:
            for r in range(4):
                vm.wait(("t", 4*blk+r))
                x4frag(T+4*(4*blk+r), 10, lambda e: BF+16*blk+4*e+r)
        else:
          vm.wait(("t", 8*blk+7))
          for e in range(4):
            for r in range(4):
                A(f"v_perm_b32 v{BF+16*blk+4*e+r}, v{T+2*(8*blk+2*r+1)+(e>>1)}, v{T+2*(8*blk+2*r)+(e>>1)}, {sSELHI if e&1 else sSELLO}")
        for e in range(4):
            c = "0" if blk == 0 else vr(D+4*e,4)
            A(f"v_mfma_f32_16x16x32_bf16 {vr(D+4*e,4)}, {vr(AF+4*blk,4)}, {vr(BF+16*blk+4*e,4)}, {c}")
    A(f"ds_write2_b32 v{7 if ax4 else 6}, v{D}, v{D+4} offset0:0 offset1:1")
    A(f"ds_write2_b32 v{7 if ax4 else 6}, v{D+8}, v{D+12} offset0:2 offset1:3")
    if ldsync:
        A("v_mov_b32 v13, 1")
        A("s_mov_b64 exec, 1")
        A("ds_add_u32 v15, v13")
        A("s_mov_b64 exec, -1")
    A("s_branch L_B0s")
    A("L_noA:")
    stamp(1)
    consts()
    A("s_waitcnt vmcnt(0)")
    A("s_barrier")
    A(f"global_load_dword v14, v12, {sDBG} sc1")
    A("L_B0s:")
    A("s_waitcnt lgkmcnt(0)")
    stamp(4)
    stamp(5)
    A(f"s_mul_i32 {sTAG}, {sTAG}, 0x0019660d"); A(f"s_add_u32 {sTAG}, {sTAG}, 0x3c6ef35f")
    A(f"s_mul_i32 {sT0}, {sHB}, 0x01010101")
    A(f"s_cmp_eq_u32 {W_}, 1"); A("s_cbranch_scc1 L_w1a")
    A(f"s_cmp_eq_u32 {W_}, 2"); A("s_cbranch_scc1 L_w2a")
    A("s_waitcnt vmcnt(0)")
    A(f"v_cmp_ne_u32 vcc, {sT0}, v14")
    A(f"s_mov_b32 {sMODE}, vcc_lo")
    if nohello: A(f"s_mov_b32 {sMODE}, 0")
    if mixmode: A(f"s_and_b32 {sT1}, {J_}, {mixmode}"); A(f"s_or_b32 {sMODE}, {sMODE}, {sT1}")
    A(f"s_cmp_eq_u32 {W_}, 3"); A("s_cbranch_scc1 L_clear")
    A(f"s_cmp_eq_u32 {sNOA}, 0xe1"); A("s_cbranch_scc1 L_qduty")
    if ldsync:
        A("L_cnt:")
        A("ds_read_b32 v13, v15")
        A("s_waitcnt lgkmcnt(0)")
        A("v_cmp_ne_u32 vcc, 4, v13")
        A("s_cbranch_vccnz L_cnt")
    A("v_lshlrev_b32 v10, 4, v0")
    for w in range(4): A(f"ds_read_b128 {vr(X+4*w,4)}, v10 offset:{L_PA+1024*w}")
    A(f"s_lshl_b32 {sT0}, {XX}, 15"); A(f"s_lshl_b32 {sT1}, {sKH}, 12"); A(f"s_add_u32 {sT1}, {sT0}, {sT1}")
    A(f"s_and_b32 {sT2}, {sCB}, 7"); A(f"s_lshl_b32 {sT2}, {sT2}, 9"); A(f"s_add_u32 {sT1}, {sT1}, {sT2}")
    A(f"v_lshl_add_u32 v11, v2, 4, {sT1}")
    A("v_lshl_add_u32 v11, v3, 13, v11")
    A("v_add_u32 v12, 256, v11")
    A(f"s_cmp_lt_u32 {JA}, 16"); A("s_cbranch_scc1 L_pubq")
    A(f"s_bfe_u32 {sT1}, {JA}, 0x20002"); A(f"s_lshl_b32 {sT1}, {sT1}, 13"); A(f"s_add_u32 {sT0}, {sT0}, {sT1}")
    A(f"s_and_b32 {sT1}, {JA}, 3"); A(f"s_lshl_b32 {sT1}, {sT1}, 8"); A(f"s_add_u32 {sT0}, {sT0}, {sT1}"); A(f"s_add_u32 {sT0}, {sT0}, {GP}")
    A(f"v_lshl_add_u32 v11, v4, 11, {sT0}")
    A("v_lshl_add_u32 v11, v3, 6, v11")
    A("v_lshl_add_u32 v11, v5, 4, v11")
    A("v_add_u32 v12, 1024, v11")
    A("L_pubq:")
    for i in range(4): A(f"v_mov_b32 v{XA+2*i+1}, {sTAG}")
    A(f"s_cmp_eq_u32 {sMODE}, 0")
    A("s_waitcnt lgkmcnt(0)")
    for h in range(2):
        A(f"v_pk_add_f32 {vr(X+2*h,2)}, {vr(X+2*h,2)}, {vr(X+4+2*h,2)}")
        A(f"v_pk_add_f32 {vr(X+8+2*h,2)}, {vr(X+8+2*h,2)}, {vr(X+12+2*h,2)}")
    for i in range(4): A(f"v_add_f32 v{XA+2*i}, v{X+i}, v{X+8+i}")
    if "p" not in skip:
        if pubsc1:
            A(f"global_store_dwordx4 v11, {vr(XA,4)}, {sWS} sc1"); A(f"global_store_dwordx4 v12, {vr(XA+4,4)}, {sWS} sc1")
        else:
            mstore([f"global_store_dwordx4 v11, {vr(XA,4)}, {sWS}", f"global_store_dwordx4 v12, {vr(XA+4,4)}, {sWS}"])
    A("s_waitcnt vmcnt(0)")
    A("L_qduty:")
    stamp(6)
    A(f"s_lshl_b32 {sT0}, {XX}, 2"); A(f"s_add_u32 {sT0}, {sT0}, {B_}"); A(f"s_lshl_b32 {sT0}, {sT0}, 13"); A(f"s_add_u32 {sT0}, {sT0}, {QP+4096}")
    A(f"v_lshl_add_u32 v10, v0, 4, {sT0}")
    if "q" not in skip:
        poll([f"global_load_dwordx4 {vr(U+4*i,4)}, v10, {sWS} offset:{1024*i-4096} sc1" for i in range(8)], range(U+1, U+32, 2), 11, tagged=True)
    for i in range(8): A(f"v_add_f32 v{U+2*i}, v{U+2*i}, v{U+16+2*i}")
    for h in range(4): A(f"v_cvt_pk_bf16_f32 v{X+h}, v{U+4*h}, v{U+4*h+2}")
    A("v_and_b32 v10, 32, v0"); A("v_and_b32 v11, 1, v3")
    A("v_add_u32 v10, v10, v11")
    A("v_lshl_add_u32 v10, v2, 1, v10")
    A("v_lshlrev_b32 v10, 2, v10")
    A(f"ds_write2st64_b32 v10, v{X}, v{X+1} offset0:{L_Q//256} offset1:{L_Q//256+1}")
    A(f"ds_write2st64_b32 v10, v{X+2}, v{X+3} offset0:{L_Q//256+2} offset1:{L_Q//256+3}")
    A("s_branch L_B1s")
    A("L_w1a:")
    if prefetch:
        A(f"s_cmp_lg_u32 {J_}, 31"); A("s_cbranch_scc1 L_B1s")
        A(f"s_getpc_b64 {sSAVE}")
        A("L_pc:")
        A("v_lshlrev_b32 v10, 7, v0")
        A("v_add_u32 v11, 0x2000, v10")
        A("v_min_u32 v10, L_end-L_pc, v10")
        A("v_min_u32 v11, L_end-L_pc, v11")
        A(f"global_load_dword v250, v10, {sSAVE}")
        A(f"global_load_dword v251, v11, {sSAVE}")
    A("s_branch L_B1s")
    A("L_w2a:")
    A(f"s_cmp_lg_u32 {J_}, 0"); A("s_cbranch_scc1 " + ("L_pad" if padT else "L_B1s"))
    if not zearly:
        zaddr(); zstore()
    if outtouch:
        A(f"s_lshl_b32 {sT0}, {XX}, 7")
        A(f"v_lshl_add_u32 v12, v5, 10, {sT0}")
        A(f"global_load_dword v248, v12, {sOUT}")
    A(f"s_lshl_b32 {sT0}, {XX}, 7"); A(f"s_add_u32 {sT0}, {sT0}, {ZF}")
    A(f"v_lshl_add_u32 v12, v2, 2, {sT0}"); A(f"v_mov_b32 v13, {sTAG}")
    A("s_waitcnt vmcnt(0)")
    A("s_mov_b64 exec, 0xffff")
    A(f"global_store_dword v12, v13, {sWS} sc1")
    A("s_mov_b64 exec, -1")
    if not padT: A("s_branch L_B1s")
    if padT:
        A("L_pad:")
        A(f"s_getpc_b64 {sSAVE}")
        A("L_pc2:")
        A(f"s_lshl_b32 {sT0}, s2, 2"); A(f"s_add_u32 {sT0}, {sT0}, L_tab-L_pc2"); A("s_add_u32 s48, s48, s40"); A("s_addc_u32 s49, s49, 0")
        A(f"s_load_dword {sT1}, {sSAVE}, 0")
        A("v_lshlrev_b32 v10, 6, v0")
        A("s_waitcnt lgkmcnt(0)")
        A("L_padl:")
        A(f"s_sub_u32 {sT1}, {sT1}, 1"); A("s_cbranch_scc1 L_B1s")
        A(f"global_load_dword v249, v10, {sX} sc1")
        A("s_branch L_padl")
    A("L_clear:")
    A(f"v_mov_b32 v13, {sMODE}"); A(f"v_mov_b32 v15, {L_MODE}")
    A("ds_write_b32 v15, v13")
    for i in range(4): A(f"v_mov_b32 v{X+i}, -1")
    A(f"s_lshl_b32 {sT0}, {XX}, 15"); A(f"s_lshl_b32 {sT1}, {J_}, 6"); A(f"s_add_u32 {sT0}, {sT0}, {sT1}"); A(f"s_add_u32 {sT0}, {sT0}, {IN1}")
    A("v_lshrrev_b32 v10, 2, v0")
    A(f"v_lshl_add_u32 v10, v10, 11, {sT0}")
    A("v_lshl_add_u32 v10, v5, 4, v10")
    A(f"s_lshl_b32 {sT0}, {XX}, 12"); A(f"s_lshl_b32 {sT1}, {J_}, 5"); A(f"s_add_u32 {sT0}, {sT0}, {sT1}"); A(f"s_add_u32 {sT0}, {sT0}, {ST}")
    A("v_bfe_u32 v11, v0, 3, 2"); A("v_and_b32 v12, 7, v0")
    A(f"v_lshl_add_u32 v11, v11, 10, {sT0}")
    A("v_lshl_add_u32 v11, v12, 2, v11")
    A(f"s_lshl_b32 {sT1}, {XX}, 5"); A(f"s_add_u32 {sT1}, {sT1}, {J_}"); A(f"s_lshl_b32 {sT1}, {sT1}, 2"); A(f"s_add_u32 {sT1}, {sT1}, {CLR}")
    A(f"v_mov_b32 v12, {sT1}"); A(f"v_mov_b32 v13, {sTAG}")
    A(f"s_cmp_eq_u32 {sMODE}, 0")
    if "c" not in skip:
        mstore([f"global_store_dwordx4 v10, {vr(X,4)}, {sWS}", f"global_store_dword v11, v{X}, {sWS}"])
    A("s_waitcnt vmcnt(0)")
    A("s_mov_b64 exec, 1")
    mstore([f"global_store_dword v12, v13, {sWS}"])
    A("s_mov_b64 exec, -1")
    A("L_B1s:")
    A("s_waitcnt lgkmcnt(0)")
    stamp(7)
    A("s_barrier")
    AD, AO, AS, AH1, AH2, AOUT, AIN2, ALW, XV = 160, 161, 162, 163, 164, 165, 166, 167, 168
    STT, WD, WO, HF, WT, BD, BO, DH, OA, DO = 24, 28, 36, 52, 56, 64, 72, 88, 104, 112
    Y = 144
    A(f"s_lshl_b32 {sRB}, {XX}, 2"); A(f"s_add_u32 {sRB}, {sRB}, {B_}")
    A(f"s_lshl_b32 {sT3}, {sRB}, 2"); A(f"s_add_u32 {sT3}, {sT3}, {W_}"); A(f"s_lshl_b32 {sT3}, {sT3}, 11")
    A(f"s_lshl_b32 {sT0}, {XX}, 7"); A(f"s_add_u32 {sT0}, {sT0}, {CLR}")
    A(f"v_lshl_add_u32 v13, v0, 2, {sT0}")
    A(f"s_lshl_b32 {sT0}, {S_}, 7"); A(f"s_add_u32 {sT0}, {sT0}, {ZF}")
    A("s_mov_b32 exec_lo, 0")
    A(f"v_mov_b32 v13, {sT0}")
    A("s_mov_b32 exec_lo, -1")
    cl = [f"global_load_dword v{Y+8}, v13, {sWS} sc1"]
    A(f"s_add_u32 {sT0}, {sT3}, {GP}")
    A(f"v_lshl_add_u32 v10, v5, 8, {sT0}")
    A("v_lshl_add_u32 v10, v4, 6, v10")
    A("v_lshl_add_u32 v10, v3, 4, v10")
    hl = [f"global_load_dwordx4 {vr(Y+4*i,4)}, v10, {sWS} offset:{1024*i} sc1" for i in range(2)]
    A(f"v_mov_b32 v{HF}, 0"); A(f"v_mov_b32 v{HF+1}, 0")
    A(f"s_and_b32 {sNOA}, s2, 0xc1")
    A(f"s_cmp_eq_u32 {sNOA}, 0xc1"); A("s_cbranch_scc1 L_noh")
    if "h" not in skip:
        poll(cl + hl, [Y+8, Y+1, Y+3, Y+5, Y+7], 11, tagged=True)
    for i in range(4): A(f"v_add_f32_dpp v{X+i}, v{Y+2*i}, v{Y+2*i} quad_perm:[1,0,3,2] {DPPF}")
    for i in range(2): A(f"v_cvt_pk_bf16_f32 v{X+4+i}, v{X+2*i}, v{X+2*i+1}")
    for i in range(2): unpack(X+2*i, X+2*i+1, X+4+i)
    for i in range(4): A(f"v_mul_f32 v{X+4+i}, {sL2E}, v{X+i}")
    for i in range(4): A(f"v_exp_f32 v{X+4+i}, -v{X+4+i}")
    for i in range(4): A(f"v_add_f32 v{X+4+i}, 1.0, v{X+4+i}")
    for i in range(4): A(f"v_rcp_f32 v{X+4+i}, v{X+4+i}")
    for i in range(4): A(f"v_mul_f32 v{X+4+i}, v{X+i}, v{X+4+i}")
    for i in range(2): A(f"v_cvt_pk_bf16_f32 v{Y+i}, v{X+4+2*i}, v{X+5+2*i}")
    for i in range(2): unpack(X+4+2*i, X+5+2*i, Y+i)
    for i in range(4): A(f"v_mul_f32_dpp v{X+4+i}, v{X+i}, v{X+4+i} quad_perm:[2,3,0,1] {DPPF}")
    A("v_cmp_eq_u32 vcc, 0, v5")
    for i in range(2): A(f"v_cvt_pk_bf16_f32 v{HF+i}, v{X+4+2*i}, v{X+5+2*i}")
    for i in range(2): A(f"v_cndmask_b32 v{HF+i}, 0, v{HF+i}, vcc")
    A("s_branch L_hdone")
    A("L_noh:")
    if "h" not in skip:
        poll(cl, [Y+8], 11, tagged=True)
    A("L_hdone:")
    A(f"s_lshl_b32 {sT1}, {S_}, 7")
    if ox4:
        A("v_and_b32 v13, 7, v0"); A("v_bfe_u32 v15, v0, 3, 1")
        A(f"v_lshl_add_u32 v10, v13, 4, {sT1}")
    else:
        A(f"v_lshl_add_u32 v10, v2, 3, {sT1}")
    A(f"s_lshl_b32 {sT2}, {B_}, 3"); A(f"s_lshr_b32 {sT2}, {sFB}, {sT2}"); A(f"s_and_b32 {sT2}, {sT2}, 31"); A(f"s_lshl_b32 {sT2}, {sT2}, 2"); A(f"s_add_u32 {sT2}, {sT2}, {W_}"); A(f"s_lshl_b32 {sT2}, {sT2}, 14")
    A(f"v_lshl_add_u32 v11, v3, 12, {sT2}")
    if ox4: A("v_lshl_add_u32 v11, v15, 10, v11")
    A(f"v_add_u32 v{AD}, v11, v10")
    A(f"s_lshl_b32 {sT2}, {sRB}, 7")
    A(f"s_lshl_b32 {sT0}, {W_}, 1"); A(f"s_add_u32 {sT2}, {sT2}, {sT0}")
    A("v_and_b32 v11, 1, v3"); A("v_lshrrev_b32 v12, 1, v3")
    A("v_lshl_add_u32 v11, v11, 6, v12")
    A(f"v_add_u32 v11, {sT2}, v11")
    if ox4: A("v_lshl_add_u32 v11, v15, 3, v11")
    A(f"v_lshl_add_u32 v{AO}, v11, 10, v10")
    A(f"s_lshl_b32 {sT2}, {sRB}, 10"); A(f"s_add_u32 {sT2}, {sT2}, {ST}")
    A(f"v_lshl_add_u32 v{AS}, v0, 4, {sT2}")
    A(f"s_add_u32 {sT2}, {sT3}, {IN1}")
    A(f"v_lshl_add_u32 v11, v4, 9, {sT2}")
    A("v_lshl_add_u32 v11, v5, 6, v11")
    A(f"v_lshl_add_u32 v{AH1}, v3, 4, v11")
    A(f"s_lshl_b32 {sT2}, {S_}, 2"); A(f"s_add_u32 {sT2}, {sT2}, {W_}"); A(f"s_lshl_b32 {sT2}, {sT2}, {3+segsh}"); A(f"s_add_u32 {sT2}, {sT2}, {ACC}")
    A(f"v_lshl_add_u32 v11, v3, {segsh}, {sT2}")
    A(f"v_lshl_add_u32 v{AH2}, v2, 2, v11")
    A(f"s_lshl_b32 {sT1}, {W_}, 10")
    if ox4:
        A("v_lshl_add_u32 v13, v13, 1, v15")
        A("v_lshl_add_u32 v13, v3, 4, v13")
        A(f"v_lshl_add_u32 v{ALW}, v13, 4, {sT1}")
    else:
        A(f"v_lshl_add_u32 v{ALW}, v0, 4, {sT1}")
    A(f"s_lshl_b32 {sT0}, {W_}, 8")
    A(f"v_lshl_add_u32 v{AIN2}, v0, 2, {sT0}")
    A(f"s_lshl_b32 {sT0}, {S_}, 7"); A(f"s_add_u32 {sT0}, {sT0}, {sT1}")
    A(f"v_lshl_add_u32 v{AOUT}, v0, 1, {sT0}")
    A(f"global_load_ushort v{XV}, v{AOUT}, {sX}")
    A("s_mov_b32 s54, 0xaaaaaaaa"); A("s_mov_b32 s55, 0xaaaaaaaa")
    for r in range(8): A(f"v_mov_b32 v{WD+r}, 0")
    A(f"s_movk_i32 {sT0}, {0x4000 if ox4 else 0x2000}")
    A(f"s_cmp_eq_u32 {sNOA}, 0xc1")
    if wdfirst:
        A("s_cbranch_scc1 L_nowd0")
        for jj in range(4):
            A(f"global_load_dwordx2 {vr(WD+2*jj,2)}, v{AD}, {sWD} offset:{1024*jj} {ntw}")
        A("L_nowd0:")
        A("s_cmp_eq_u32 0, 0")
    stamp(8)
    A("s_barrier")
    vm = VM(A)
    stl = f"global_load_dwordx4 {vr(STT,4)}, v{AS}, {sWS} sc1"
    h1l = [f"global_load_dwordx4 {vr(OA+4*sh,4)}, v{AH1}, {sWS} offset:{256*sh} sc1" for sh in range(2)]
    A(stl); vm.issue("st")
    A("s_cbranch_scc1 L_nowd")
    if ox4:
        for i in range(2):
            A(f"global_load_dwordx4 {vr(WD+4*i,4)}, v{AD}, {sWD} offset:{2048*i} {ntw}")
        A("L_nowd:")
        for i in range(4):
            A(f"global_load_dwordx4 {vr(WO+4*i,4)}, v{AO}, {sWO} {ntw}"); vm.issue(("wo", 2*i+1))
            if i < 3: A(f"v_add_u32 v{AO}, {sT0}, v{AO}")
    else:
      for jj in range(4):
        A(f"global_load_dwordx2 {vr(WD+2*jj,2)}, v{AD}, {sWD} offset:{1024*jj} {ntw}")
      A("L_nowd:")
      for jj in range(defer):
        A(f"global_load_dwordx2 {vr(WO+2*jj,2)}, v{AO}, {sWO} {ntw}"); vm.issue(("wo", jj))
        if jj < 7: A(f"v_add_u32 v{AO}, {sT0}, v{AO}")
    stamp(9)
    A("s_barrier")
    if defer < 8:
        A("s_barrier")
        for jj in range(defer, 8):
            A(f"global_load_dwordx2 {vr(WO+2*jj,2)}, v{AO}, {sWO} {ntw}"); vm.issue(("wo", jj))
            if jj < 7: A(f"v_add_u32 v{AO}, {sT0}, v{AO}")
    vm.wait("st")
    poll([stl], range(STT, STT+4), 11, first_issued=True)
    m0, l0, m1, l1 = STT, STT+1, STT+2, STT+3
    A(f"v_max_f32 v10, v{m0}, v{m1}")
    def wdperm(e):
        if ox4:
            if e < 2: x4frag(WD+4*e, 172, lambda q: BD+2*q+e)
            return
        for r in range(2):
            A(f"v_perm_b32 v{BD+2*e+r}, v{WD+2*(2*r+1)+(e>>1)}, v{WD+2*(2*r)+(e>>1)}, {sSELHI if e&1 else sSELLO}")
    wdperm(0)
    A(f"v_max_f32_dpp v10, v10, v10 quad_perm:[1,0,3,2] {DPPF}")
    wdperm(1)
    A(f"v_max_f32_dpp v11, v10, v10 quad_perm:[2,3,0,1] {DPPF}")
    wdperm(2)
    A(f"v_max_f32_dpp v11, v11, v11 row_ror:4 {DPPF}")
    wdperm(3)
    A(f"v_max_f32_dpp v11, v11, v11 row_ror:8 {DPPF}")
    A(f"v_sub_f32 v{m0}, v{m0}, v11"); A(f"v_sub_f32 v{m1}, v{m1}, v11"); A("v_sub_f32 v10, v10, v11")
    A(f"v_mul_f32 v{m0}, {sL2E}, v{m0}"); A(f"v_mul_f32 v{m1}, {sL2E}, v{m1}"); A(f"v_mul_f32 v10, {sL2E}, v10")
    A(f"v_exp_f32 v{m0}, v{m0}"); A(f"v_exp_f32 v{m1}, v{m1}"); A("v_exp_f32 v10, v10")
    A(f"v_mul_f32 v12, v{m0}, v{l0}")
    A(f"v_fmac_f32 v12, v{m1}, v{l1}")
    def dhm(e): A(f"v_mfma_f32_16x16x16_bf16 {vr(DH+4*e,4)}, {vr(HF,2)}, {vr(BD+2*e,2)}, 0")
    dhm(0)
    A(f"v_add_f32_dpp v12, v12, v12 quad_perm:[1,0,3,2] {DPPF}")
    dhm(1)
    A(f"v_add_f32_dpp v12, v12, v12 quad_perm:[2,3,0,1] {DPPF}")
    dhm(2)
    A(f"v_add_f32_dpp v12, v12, v12 row_ror:8 {DPPF}")
    dhm(3)
    A(f"v_add_f32_dpp v12, v12, v12 row_ror:4 {DPPF}")
    A("v_rcp_f32 v12, v12")
    A("v_mul_f32 v10, v10, v12")
    for s in range(8): A(f"v_mov_b32_dpp v{WT+s}, v10 row_newbcast:{2*s} {DPPF}")
    stamp(10)
    def woperm(r):
        if ox4: x4frag(WO+4*r, 172, lambda e: BO+4*e+r)
        else:
            for e in range(4):
                A(f"v_perm_b32 v{BO+4*e+r}, v{WO+2*(2*r+1)+(e>>1)}, v{WO+2*(2*r)+(e>>1)}, {sSELHI if e&1 else sSELLO}")
    h1at = {0: 3, 1: 1, 2: -1, 3: 2}[h1early]
    if h1at < 0:
        for l in h1l: A(l); vm.issue("h1")
    for r in range(4):
        vm.wait(("wo", 2*r+1))
        if r == h1at:
            for l in h1l: A(l); vm.issue("h1")
        woperm(r)
    stamp(11)
    if not h1pipe:
        vm.wait_all()
        poll(h1l, range(OA, OA+8), 11, first_issued=True)
    else:
        OB = 176
        h1b = [f"global_load_dwordx4 {vr(OB+4*sh,4)}, v{AH1}, {sWS} offset:{256*sh} sc1" for sh in range(2)]
        A(f"s_mov_b32 {sSPIN}, {SPIN}")
        for l in h1b: A(l)
        A("s_mov_b64 s[58:59], -1"); A("s_mov_b64 s[60:61], -1")
        A("L_hp:")
        A("s_mov_b64 exec, s[58:59]")
        A("s_waitcnt vmcnt(2)")
        max_tree_u32(11, range(OA, OA+8))
        A("v_cmp_eq_u32 vcc, -1, v11")
        A("s_cbranch_vccz L_hpa")
        A("s_mov_b64 exec, vcc")
        for l in h1l: A(l)
        A("s_mov_b64 s[58:59], vcc")
        A("s_mov_b64 exec, s[60:61]")
        A("s_waitcnt vmcnt(2)")
        max_tree_u32(11, range(OB, OB+8))
        A("v_cmp_eq_u32 vcc, -1, v11")
        A("s_cbranch_vccz L_hpb")
        A("s_mov_b64 exec, vcc")
        for l in h1b: A(l)
        A("s_mov_b64 s[60:61], vcc")
        A(f"s_sub_u32 {sSPIN}, {sSPIN}, 1")
        A("s_cbranch_scc0 L_hp")
        A("L_hpb:")
        A("s_mov_b64 exec, -1")
        for sh in range(2):
            for e in range(4):
                A(f"v_mfma_f32_16x16x32_bf16 {vr(DO+16*sh+4*e,4)}, {vr(OB+4*sh,4)}, {vr(BO+4*e,4)}, 0")
        A("s_nop 0")
        A("s_branch L_hpf")
        A("L_hpa:")
        A("s_mov_b64 exec, -1")
    stamp(12)
    def om(sh, e): A(f"v_mfma_f32_16x16x32_bf16 {vr(DO+16*sh+4*e,4)}, {vr(OA+4*sh,4)}, {vr(BO+4*e,4)}, 0")
    def of(sh, e, hh): A(f"v_pk_fma_f32 {vr(DH+4*e,2)}, {vr(DO+16*sh+4*e+2*hh,2)}, {vr(WT+4*sh+2*hh,2)}, {vr(DH+4*e,2)}")
    if h1pipe:
        for sh in range(2):
            for e in range(4): om(sh, e)
        A("s_nop 0")
        A("L_hpf:")
        for sh in range(2):
            for hh in range(2):
                for e in range(4): of(sh, e, hh)
        for e in range(4): A(f"v_add_f32 v{STT+e}, v{DH+4*e}, v{DH+4*e+1}")
    elif sched:
        for e in range(4): om(0, e)
        for e in range(4):
            om(1, e); of(0, e, 0); of(0, e, 1)
        for e in range(4):
            of(1, e, 0); of(1, e, 1)
            if e: A(f"v_add_f32 v{STT+e-1}, v{DH+4*(e-1)}, v{DH+4*(e-1)+1}")
        A(f"v_add_f32 v{STT+3}, v{DH+12}, v{DH+13}")
    else:
        for sh in range(2):
            for e in range(4): om(sh, e)
        for sh in range(2):
            for hh in range(2):
                for e in range(4): of(sh, e, hh)
        for e in range(4): A(f"v_add_f32 v{STT+e}, v{DH+4*e}, v{DH+4*e+1}")
    A(f"ds_write_b128 v{ALW}, {vr(STT,4)} offset:{L_PA}")
    A("s_waitcnt lgkmcnt(0)")
    A("s_barrier")
    A(f"ds_read2st64_b32 {vr(DO,2)}, v{AIN2} offset0:0 offset1:4")
    A(f"ds_read2st64_b32 {vr(DO+2,2)}, v{AIN2} offset0:8 offset1:12")
    A(f"v_lshlrev_b32 v{XV}, 16, v{XV}")
    A("s_waitcnt lgkmcnt(0)")
    A(f"v_pk_add_f32 {vr(DO,2)}, {vr(DO,2)}, {vr(DO+2,2)}")
    A(f"v_add_f32 v{DO}, v{DO}, v{DO+1}")
    A(f"v_cndmask_b32 v{STT}, v{DO}, 1.0, s[54:55]")
    A(f"v_cndmask_b32 v{STT+1}, 1.0, v{DO}, s[54:55]")
    A(f"global_atomic_add_f32 v{STT+2}, v{AH2}, v{STT}, {sWS} sc0 sc1")
    A(f"global_atomic_add_f32 v{STT+3}, v{AH2}, v{STT+1}, {sWS} offset:{4 << segsh} sc0 sc1")
    stamp(13)
    A(f"v_add_f32 v{XV}, v{XV}, v{DO}")
    A(f"s_mov_b32 {sT0}, 0x41f80000")
    A("s_waitcnt vmcnt(1)")
    A(f"v_cmp_eq_f32 vcc, {sT0}, v{STT+2}")
    A("s_and_b64 vcc, vcc, s[54:55]")
    A("s_lshr_b64 s[58:59], vcc, 1")
    A("s_waitcnt vmcnt(0)")
    stamp(5)
    A(f"v_cmp_eq_f32 vcc, {sT0}, v{STT+3}")
    A(f"v_cndmask_b32 v{STT+2}, v{STT+2}, v{STT+3}, s[54:55]")
    A("s_andn2_b64 vcc, vcc, s[54:55]")
    A(f"v_add_f32 v{XV}, v{XV}, v{STT+2}")
    A("s_lshl_b64 vcc, vcc, 1")
    A(f"v_cvt_pk_bf16_f32 v{XV}, v{XV}, v{XV}")
    LF = "L_fin" if (diag or probe >= 0) else "L_svcend"
    A("s_or_b64 exec, vcc, s[58:59]")
    A(f"s_cbranch_execz {LF}")
    A(f"global_store_short v{AOUT}, v{XV}, {sOUT}")
    A(f"s_or_b32 {sT0}, {S_}, {W_}"); A(f"s_cbranch_scc1 {LF}")
    A("s_bitcmp1_b32 s58, 0"); A(f"s_cbranch_scc0 {LF}")
    A("s_mov_b64 exec, 0xffffffff")
    A(f"s_mov_b32 {sT0}, {EPOCH}"); A(f"v_lshl_add_u32 v10, v0, 2, {sT0}"); A(f"v_mov_b32 v11, {sTAG}")
    A(f"global_store_dword v10, v11, {sWS}")
    if LF == "L_fin": A("s_branch L_fin")
    else: A("L_svcend:"); A("s_endpgm")

    A("L_stream:")
    vm = VM(A)
    KR, VF, S, Q, QD, O, P, TM = 16, 144, 192, 200, 204, 236, 244, 248
    def kreg(i): return KR + 4*i
    def vreg(i): return VF + 4*i if i < nVf else KR + 4*(i - nVf)
    AT = [KR + 4*(32 - nVf), KR + 4*(32 - nVf) + 16]
    assert nVf >= 8 and nVf <= 12
    A(f"s_sub_u32 {W_}, {W_}, 4")
    A(f"s_lshl_b32 {sT0}, {B_}, 3"); A(f"s_add_u32 {sT0}, {sT0}, {XX}"); A(f"s_lshl_b32 {sT0}, {sT0}, 22")
    A(f"s_lshl_b32 {sT1}, {S_}, 17"); A(f"s_add_u32 {sT0}, {sT0}, {sT1}"); A(f"s_add_u32 {sT0}, {sT0}, {12288*256}")
    A(f"s_lshl_b32 {sT1}, {W_}, 10")
    if swz == "xorj":
        A(f"s_lshl_b32 {sT2}, {J_}, 12"); A(f"s_add_u32 {sT1}, {sT1}, {sT2}")
    elif swz == "xor7":
        A(f"s_add_u32 {sT2}, {J_}, {XX}"); A(f"s_and_b32 {sT2}, {sT2}, 7"); A(f"s_lshl_b32 {sT2}, {sT2}, 12"); A(f"s_add_u32 {sT1}, {sT1}, {sT2}")
    A(f"v_lshl_add_u32 v6, v0, 4, {sT1}")
    A(f"v_lshl_add_u32 v7, v5, 4, {sT1}")
    A("v_lshl_add_u32 v7, v4, 8, v7")
    A("v_lshl_add_u32 v7, v3, 6, v7")
    A("s_waitcnt lgkmcnt(0)")
    A(f"s_add_u32 s10, s10, {sT0}"); A("s_addc_u32 s11, s11, 0")
    A(f"s_add_u32 s12, s12, {sT0}"); A("s_addc_u32 s13, s13, 0")
    stamp(1)
    if tlb:
        A("s_mov_b64 exec, 1")
        A(f"s_cmp_lg_u32 {W_}, 0"); A("s_cbranch_scc1 L_notlb")
        A(f"s_lshl_b32 {sT0}, {XX}, 19"); A(f"s_lshl_b32 {sT1}, {J_}, 14"); A(f"s_add_u32 {sT0}, {sT0}, {sT1}"); A(f"v_mov_b32 v8, {sT0}")
        A(f"s_mul_i32 {sT0}, {XX}, {224*1024}"); A(f"s_mul_i32 {sT1}, {J_}, 7168"); A(f"s_add_u32 {sT0}, {sT0}, {sT1}"); A(f"v_mov_b32 v9, {sT0}")
        A(f"s_lshl_b32 {sT0}, s2, 7"); A(f"s_add_u32 {sT0}, {sT0}, 0x180000"); A(f"v_mov_b32 v10, {sT0}")
        A(f"global_load_dword v252, v6, {sV} {nt}")
        A(f"global_load_dword v253, v8, {sWO} {nt}")
        A(f"global_load_dword v254, v9, {sWD} {nt}")
        A(f"global_load_dword v255, v10, {sWS} {nt}")
        A("L_notlb:")
        A("s_mov_b64 exec, -1")
    nld = [0]
    def load(which, i):
        t = 8 + (nld[0] & 1); nld[0] += 1
        src, base, r = (7, sK, kreg(i)) if which == "K" else (6, sV, vreg(i))
        if i == 0: t = src
        else: A(f"v_xor_b32 v{t}, {4096*i:#x}, v{src}")
        A(f"global_load_dwordx4 {vr(r,4)}, v{t}, {base} {nt}"); vm.issue((which, i))
    for i in range(nB0): load("K", i)
    stamp(4)
    A("s_barrier")
    stamp(5)
    for i in range(nB0, 32): load("K", i)
    for i in range(nVf): load("V", i)
    consts()
    A("v_lshlrev_b32 v10, 8, v5")
    A("v_lshl_add_u32 v10, v3, 6, v10")
    A("v_lshl_add_u32 v10, v4, 4, v10")
    A(f"v_mov_b32 v11, {L_MODE}")
    stamp(6)
    A("s_barrier")
    stamp(7)
    A(f"ds_read_b128 {vr(Q,4)}, v10 offset:{L_Q}")
    A("ds_read_b32 v11, v11")
    A("s_waitcnt lgkmcnt(0)")
    A(f"v_readfirstlane_b32 {sMODE}, v11")
    def extract(i):
        d = QD + 4*(i % 8); s = S + (i & 1) + 2*(i >> 3); t = (i >> 1) & 3
        ops = []; first = True
        for v in range(4):
            if v == t: continue
            n = 4*((t - v) % 4)
            src1 = d + t if first else s
            ops.append(f"v_add_f32_dpp v{s}, v{d+v}, v{src1} row_ror:{n} row_mask:0xf bank_mask:{1<<t:#x}")
            first = False
        return ops
    def qk(i):
        vm.wait(("K", i))
        A(f"v_mfma_f32_16x16x32_bf16 {vr(QD+4*(i%8),4)}, {vr(kreg(i),4)}, {vr(Q,4)}, 0")
    nv = nVf
    if "k" not in skip:
      for i in range(4): qk(i)
      for i in range(0, 32, 2):
        a, b = extract(i), extract(i+1)
        A(a[0]); A(b[0])
        if i + 4 < 32: qk(i+4)
        A(a[1]); A(b[1])
        if i + 5 < 32: qk(i+5)
        A(a[2]); A(b[2])
        if qkint and (i // 2 + 1) % qkint == 0 and i < 30: load("V", nv); nv += 1
    stamp(2)
    for _ in range(qkload): load("V", nv); nv += 1
    stamp(3)
    A(f"s_mov_b32 s46, {SCALE:#x}"); A(f"s_mov_b32 s47, {SCALE:#x}")
    for i in range(4): A(f"v_cvt_pk_bf16_f32 v{P+i}, v{S+2*i}, v{S+2*i+1}")
    for i in range(4): unpack(S+2*i, S+2*i+1, P+i)
    for i in range(4): A(f"v_pk_mul_f32 {vr(S+2*i,2)}, {vr(S+2*i,2)}, {sPK}")
    for i in range(4): A(f"v_cvt_pk_bf16_f32 v{P+i}, v{S+2*i}, v{S+2*i+1}")
    for i in range(4): unpack(S+2*i, S+2*i+1, P+i)
    M_, Lr = TM, TM+1
    A(f"v_max3_f32 v{M_}, v{S}, v{S+1}, v{S+2}")
    A(f"v_max3_f32 v{TM+2}, v{S+3}, v{S+4}, v{S+5}")
    A(f"v_max3_f32 v{M_}, v{M_}, v{S+6}, v{S+7}")
    A(f"v_max_f32 v{M_}, v{M_}, v{TM+2}")
    A(f"v_max_f32_dpp v{M_}, v{M_}, v{M_} row_ror:4 {DPPF}")
    A(f"v_max_f32_dpp v{M_}, v{M_}, v{M_} row_ror:8 {DPPF}")
    rows_reduce("v_max_f32", M_, TM+2)
    for _ in range(smint): load("V", nv); nv += 1
    A(f"s_mov_b32 s46, {LOG2E:#x}"); A(f"s_mov_b32 s47, {LOG2E:#x}")
    for i in range(4):
        A(f"v_pk_add_f32 {vr(S+2*i,2)}, {vr(S+2*i,2)}, {vr(M_,2)} op_sel_hi:[1,0] neg_lo:[0,1] neg_hi:[0,1]")
    for i in range(4): A(f"v_pk_mul_f32 {vr(S+2*i,2)}, {vr(S+2*i,2)}, {sPK}")
    for i in range(8): A(f"v_exp_f32 v{S+i}, v{S+i}")
    for i in range(4): A(f"v_cvt_pk_bf16_f32 v{P+i}, v{S+2*i}, v{S+2*i+1}")
    A(f"v_pk_add_f32 {vr(S,2)}, {vr(S,2)}, {vr(S+2,2)}")
    A(f"v_pk_add_f32 {vr(S+4,2)}, {vr(S+4,2)}, {vr(S+6,2)}")
    A(f"v_pk_add_f32 {vr(S,2)}, {vr(S,2)}, {vr(S+4,2)}")
    A(f"v_add_f32 v{Lr}, v{S}, v{S+1}")
    A(f"v_add_f32_dpp v{Lr}, v{Lr}, v{Lr} row_ror:4 {DPPF}")
    A(f"v_add_f32_dpp v{Lr}, v{Lr}, v{Lr} row_ror:8 {DPPF}")
    rows_reduce("v_add_f32", Lr, TM+2)
    A(f"s_lshl_b32 {sT0}, {XX}, 12"); A(f"s_lshl_b32 {sT1}, {J_}, 5"); A(f"s_add_u32 {sT0}, {sT0}, {sT1}")
    A(f"s_lshl_b32 {sT1}, {W_}, 3"); A(f"s_add_u32 {sT0}, {sT0}, {sT1}"); A(f"s_add_u32 {sT0}, {sT0}, {ST}")
    A(f"v_lshl_add_u32 v10, v5, 10, {sT0}")
    A(f"s_lshl_b32 {sT1}, {W_}, 2")
    A(f"v_lshl_add_u32 v11, v5, 4, {sT1}")
    A(f"v_min_u32 v{M_}, -2, v{M_}"); A(f"v_min_u32 v{Lr}, -2, v{Lr}")
    A(f"s_cmp_eq_u32 {sMODE}, 0")
    A("s_mov_b64 exec, 0xf")
    if "s" not in skip:
        mstore([f"global_store_dwordx2 v10, {vr(M_,2)}, {sWS}"]); vm.issue("stats", store=True)
    A(f"ds_write_b32 v11, v{M_} offset:{L_M}")
    A("s_mov_b64 exec, -1")
    for _ in range(smload): load("V", nv); nv += 1
    stamp(8)
    for r in range(32): A(f"v_mov_b32 v{AT[0]+r}, 0")
    def build_at(blk):
        for t in range(4):
            for r in range(4):
                n = 4*((t - r) % 4)
                ctl = f"row_ror:{n}" if n else "quad_perm:[0,1,2,3]"
                A(f"v_mov_b32_dpp v{AT[blk&1]+4*t+r}, v{P+blk} {ctl} row_mask:0xf bank_mask:{1<<t:#x}")
    def perm(blk, r, e):
        A(f"v_perm_b32 v{QD+4*e+r}, v{vreg(8*blk+2*r+1)+(e>>1)}, v{vreg(8*blk+2*r)+(e>>1)}, {sSELHI if e&1 else sSELLO}")
    def pvm(blk, e):
        c = "0" if (blk == 0 and (e & 3) == 0) else vr(O+4*(e>>2),4)
        A(f"v_mfma_f32_16x16x32_bf16 {vr(O+4*(e>>2),4)}, {vr(AT[blk&1]+4*(e&3),4)}, {vr(QD+4*e,4)}, {c}")
    def pv(blk):
        for r in range(3):
            vm.wait(("V", 8*blk+2*r+1))
            for e in range(8): perm(blk, r, e)
        vm.wait(("V", 8*blk+7))
        perm(blk, 3, 0); perm(blk, 3, 1); perm(blk, 3, 2)
        for e in range(8):
            pvm(blk, e)
            if e + 3 < 8: perm(blk, 3, e+3)
    if smint: load("V", nv); nv += 1
    build_at(0)
    if smint: load("V", nv); nv += 1
    build_at(1)
    while nv < min(pv0, 32): load("V", nv); nv += 1
    if pv0 <= 32: pv(0); build_at(2)
    while nv < min(pv1, 32): load("V", nv); nv += 1
    if pv1 <= 32: pv(1); build_at(3)
    while nv < 32: load("V", nv); nv += 1
    A("s_waitcnt lgkmcnt(0)")
    stamp(9)
    A("s_barrier")
    F = TM + 4
    A(f"s_lshl_b32 {sT0}, {W_}, 4")
    A(f"v_mov_b32 v10, {sT0}")
    A(f"ds_read_b128 {vr(F,4)}, v10 offset:{L_M}")
    A(f"s_lshl_b32 {sT0}, {W_}, 11")
    A(f"v_lshl_add_u32 v12, v0, 2, {sT0}")
    A(f"s_lshl_b32 {sT0}, {W_}, 9")
    A(f"v_lshl_add_u32 v13, v0, 3, {sT0}")
    A(f"s_lshl_b32 {sT0}, {XX}, 15"); A(f"s_lshl_b32 {sT1}, {W_}, 13"); A(f"s_add_u32 {sT0}, {sT0}, {sT1}")
    A(f"s_lshl_b32 {sT1}, {J_}, 6"); A(f"s_add_u32 {sT0}, {sT0}, {sT1}"); A(f"s_add_u32 {sT0}, {sT0}, {IN1}")
    A(f"v_lshl_add_u32 v14, v3, 11, {sT0}")
    A("v_lshl_add_u32 v14, v2, 2, v14")
    A("s_waitcnt lgkmcnt(0)")
    A(f"v_max3_f32 v10, v{F}, v{F+1}, v{F+2}")
    A(f"v_max_f32 v10, v10, v{F+3}")
    for i in range(4): A(f"v_sub_f32 v{F+i}, v{F+i}, v10")
    for i in range(4): A(f"v_mul_f32 v{F+i}, {sL2E}, v{F+i}")
    for i in range(4): A(f"v_exp_f32 v{F+i}, v{F+i}")
    if pv0 > 32: pv(0); build_at(2)
    if pv1 > 32: pv(1); build_at(3)
    pv(2)
    stamp(10)
    pv(3)
    for h in range(4):
        A(f"ds_write2st64_b32 v12, v{O+h}, v{O+4+h} offset0:{L_O//256+2*h} offset1:{L_O//256+2*h+1}")
    A("s_waitcnt lgkmcnt(0)")
    stamp(11)
    A("s_barrier")
    R = QD
    for w in range(4): A(f"ds_read_b64 {vr(R+2*w,2)}, v13 offset:{L_O+2048*w}")
    A(f"s_cmp_eq_u32 {sMODE}, 0")
    A("s_waitcnt lgkmcnt(0)")
    A(f"v_pk_mul_f32 {vr(R,2)}, {vr(R,2)}, {vr(F,2)} op_sel_hi:[1,0]")
    A(f"v_pk_fma_f32 {vr(R,2)}, {vr(R+2,2)}, {vr(F,2)}, {vr(R,2)} op_sel:[0,1,0] op_sel_hi:[1,1,1]")
    A(f"v_pk_fma_f32 {vr(R,2)}, {vr(R+4,2)}, {vr(F+2,2)}, {vr(R,2)} op_sel_hi:[1,0,1]")
    A(f"v_pk_fma_f32 {vr(R,2)}, {vr(R+6,2)}, {vr(F+2,2)}, {vr(R,2)} op_sel:[0,1,0] op_sel_hi:[1,1,1]")
    A(f"v_cvt_pk_bf16_f32 v{R}, v{R}, v{R+1}")
    A(f"v_min_u32 v{R}, -2, v{R}")
    if h1sc1: A(f"global_store_dword v14, v{R}, {sWS} sc1")
    else: mstore([f"global_store_dword v14, v{R}, {sWS}"])
    if defer < 8: A("s_barrier")
    stamp(12)
    if diag:
        A(f"s_cmp_eq_u32 {sMODE}, 0"); A("s_cbranch_scc1 L_dm"); stamp(13); A("L_dm:")
    A("s_barrier")
    if wbl2 & 2:
        A(f"s_lshl_b32 {sT1}, {J_}, 3"); A(f"s_add_u32 {sT1}, {sT1}, {W_}"); A(f"s_cmp_lg_u32 {sT1}, 0"); A("s_cbranch_scc1 L_fin")
        A("buffer_wbl2 sc1")
    A("L_fin:")
    if probe >= 0:
        stamp(14)
        A("s_waitcnt vmcnt(0)")
        stamp(15)
        A("s_waitcnt lgkmcnt(0)")
        A("v_readfirstlane_b32 s40, v1")
        if pwave >= 0:
            A(f"s_cmp_lg_u32 s40, {pwave}"); A("s_cbranch_scc1 L_end")
        if pwg >= 0:
            A(f"s_cmp_lg_u32 s2, {pwg}"); A("s_cbranch_scc1 L_end")
        A("s_sub_u32 s41, s66, s64"); A(f"s_mul_i32 s41, s41, {pmul}"); A("s_add_u32 s41, s41, 4000")
        if pxcc:
            A("s_getreg_b32 s42, hwreg(HW_REG_XCC_ID, 0, 4)"); A(f"s_and_b32 s42, s42, {pxcc}"); A("s_mul_i32 s42, s42, 1000"); A("s_add_u32 s41, s41, s42")
        A("L_spin:")
        A("s_memrealtime s[68:69]"); A("s_waitcnt lgkmcnt(0)")
        A("s_sub_u32 s42, s68, s64"); A("s_cmp_lt_u32 s42, s41"); A("s_cbranch_scc1 L_spin")
    if diag:
        stamp(14)
        A("s_waitcnt vmcnt(0)")
        stamp(15)
        A("s_waitcnt lgkmcnt(0)")
        A("L_dl:"); A("s_sleep 16"); A("s_memrealtime s[60:61]"); A("s_waitcnt lgkmcnt(0)"); A("s_sub_u32 s60, s60, s64"); A("s_cmp_lt_u32 s60, 2200"); A("s_cbranch_scc1 L_dl")
        A("s_mov_b64 exec, 1")
        A("v_readfirstlane_b32 s40, v1")
        A("s_lshl_b32 s41, s2, 3"); A("s_add_u32 s40, s40, s41"); A("s_lshl_b32 s40, s40, 8"); A("s_add_u32 s40, s40, 0x10000000")
        A("v_mov_b32 v2, s40")
        for k in range(16):
            A(f"v_mov_b32 v4, s{64+2*k}"); A(f"v_mov_b32 v5, s{65+2*k}")
            A(f"global_store_dwordx2 v2, v[4:5], {sWS} offset:{8*k}")
            A("s_nop 1")
    A("L_end:")
    A("s_endpgm")
    if padT:
        A("L_tab:")
        for wg in range(256):
            x, j = wg & 7, wg >> 3
            a_ = PERM[j]
            if a_ < 16: c = 512 if (a_ >> 1) == 3 else 256
            elif (x & 1) and a_ >= 28: c = 0
            else: c = 384 if BLK[x][(a_ >> 2) & 3] % 4 == 3 else 256
            o = 128 if ((x & 1) and j >= 24) else 192
            if (x & 1) and j >= 24: c -= 72
            if (j & 7) == 3: o *= 2
            if j == 31: c += 90
            T = padTo if (x & 1) and padTo else padT
            A(f".long {max(0, round((T - c - o) / 36))}")
    A('.section .rodata,"a"'); A(".p2align 6"); A(f".amdhsa_kernel {KNAME}")
    A("  .amdhsa_next_free_vgpr 256"); A("  .amdhsa_next_free_sgpr 102"); A("  .amdhsa_accum_offset 256")
    A("  .amdhsa_group_segment_fixed_size 0"); A("  .amdhsa_kernarg_size 96"); A("  .amdhsa_user_sgpr_count 2")
    A("  .amdhsa_user_sgpr_kernarg_segment_ptr 1"); A("  .amdhsa_system_sgpr_workgroup_id_x 1")
    A("  .amdhsa_float_denorm_mode_32 3")
    A(".end_amdhsa_kernel")
    lines = []
    for l in L: lines.extend(l.split("\n"))
    lines = hazard_pass(lines)
    return "\n".join(lines) + "\n"

if __name__ == "__main__":
    ap = argparse.ArgumentParser()
    ap.add_argument("out")
    ap.add_argument("--opt", nargs="*", default=[])
    a = ap.parse_args()
    kw = {}
    for o in a.opt:
        k, v = o.split("=")
        try: v = int(v)
        except ValueError: pass
        kw[k] = v
    open(a.out, "w").write(gen(**kw))
```

```python
import sys, argparse
sys.path.insert(0, "gen")
from asmlib import *

KNAME = "parallel_sum__sliding_block_cached__swiglu_ffn__decode_kernel"
QP    = 0x000000
GP    = 0x040000
CLR   = 0x080000
EPOCH = 0x081000
ST    = 0x088000
IN1   = 0x090000
ZF    = 0x082000
ACC   = 0x100000
IN2   = 0x100000
L_PA, L_O, L_Q, L_M, L_MODE, L_CNT, L_X = 0, 4096, 12288, 13312, 13376, 13380, 4096
LDS_BYTES = 13440
LOG2E = 0x3fb8aa3b
SCALE = 0x3db504f3
EPS = 0x3727c5ac
SPIN = 1 << 22

HEADER = open("parallel_sum__sliding_block_cached__swiglu_ffn__decode.s.ref").read().split("; Override launch")[0]

def gen(diag=False, nt="nt", ntw="nt", nB0=3, nVf=12, swz="xorj", fast=1, pollsleep=0, prefetch=1, align=1,
        skip="", qkload=2, smload=2, pv0=19, pv1=27, walk=0, ldsync=1, h1early=1, tlb=0, in2touch=0, pubtouch=0, segsh=8, outtouch=0, remap=-1, sched=1, ox4=0, ax4=0, h1pipe=0, fine=0, h1lay=1, h1skip=1, prio=1, woearly=0, st1=0, defer=8, head2=1, zearly=0, h1sc1=0, wdfirst=0, mixmode=0, pert1=0, pertall=0, qkint=0, smint=0, padT=0, padTo=0, cmap=1, nohello=0, pubsc1=0, outsc1=0, wbl2=0, pad2=0, cw=0, h2sleep=0, h2pre=0, pubdelay=0, condelay=0, pxcc=0, probe=-1, pwave=-1, pwg=-1, pmul=4):
    L = []
    A = L.append
    def stamp(k):
        if probe >= 0:
            if k == 0: A("s_memrealtime s[64:65]"); A("s_memrealtime s[66:67]")
            elif k == probe: A("s_memrealtime s[66:67]")
        if diag:
            A(f"s_memrealtime s[{64+2*k}:{65+2*k}]")
            if k == 1:
                for q in range(2, 16): A(f"s_mov_b64 s[{64+2*q}:{65+2*q}], 0")
    uid = [0]
    def lab(p):
        uid[0] += 1
        return f"L_{p}_{uid[0]}"
    DPPF = "row_mask:0xf bank_mask:0xf"
    sX, sK, sV, sWQ, sWO, sG, sU, sWD, sOUT, sDBG, sWS = (f"s[{a}:{a+1}]" for a in (8,10,12,14,16,20,22,24,26,28,30))
    W_, XX, J_, B_, S_ = "s3", "s4", "s5", "s6", "s7"
    sPITCH, sCB, sKH, sFB, sHB = "s32", "s33", "s34", "s35", "s36"
    sSELLO, sSELHI, sHI = "s37", "s38", "s39"
    sT0, sT1, sT2, sT3 = "s40", "s41", "s42", "s43"
    sSPIN = "s44"; sMODE = "s45"
    sPK = "s[46:47]"
    sSAVE = "s[48:49]"
    sTB = "s[50:51]"
    sRB = "s52"; sL2E = "s53"; sTAG = "s56"; sNOA = "s57"; JA = "s62"
    if remap == 1:
        PERM = [None]*32
        for i, j in enumerate((3, 11, 19, 27)): PERM[j] = 28 + i
        for a, j in zip((6, 7, 16, 17, 18, 19), (24, 25, 26, 28, 29, 30)): PERM[j] = a
        rest = [a for a in range(32) if a not in PERM]
        for j in range(32):
            if PERM[j] is None: PERM[j] = rest.pop(0)
        heavy = [3, 7, 11, 15, 19, 23, 27]; norm = [b for b in range(28) if b not in heavy]
        BLK = []
        for x in range(8):
            row = [] if x == 0 else [heavy.pop(0)]
            while len(row) < (3 if x & 1 else 4): row.append(norm.pop(0))
            BLK.append(row + [0]*(4 - len(row)))
    else:
        PERM = list(range(32))
        BLK = [[min(27, ((7*x + 1) >> 1) + u) for u in range(4)] for x in range(8)]

    def unpack(lo, hi, src):
        A(f"v_lshlrev_b32 v{lo}, 16, v{src}")
        A(f"v_and_b32 v{hi}, {sHI}, v{src}")
    def rows_reduce(op, v, t):
        A(f"v_mov_b32 v{t}, v{v}")
        A(f"v_permlane16_swap_b32 v{v}, v{t}")
        A(f"{op} v{v}, v{v}, v{t}")
        A(f"v_mov_b32 v{t}, v{v}")
        A(f"v_permlane32_swap_b32 v{v}, v{t}")
        A(f"{op} v{v}, v{v}, v{t}")
    def max_tree_u32(dst, regs):
        regs = list(regs)
        A(f"v_max3_u32 v{dst}, v{regs[0]}, v{regs[1]}, v{regs[2]}")
        regs = regs[3:]
        while len(regs) >= 2:
            A(f"v_max3_u32 v{dst}, v{dst}, v{regs[0]}, v{regs[1]}"); regs = regs[2:]
        if regs: A(f"v_max_u32 v{dst}, v{dst}, v{regs[0]}")
    def poll(loads, regs, tmp, first_issued=False, tagged=False, sleep=None):
        lp, dn = lab("poll"), lab("pdone")
        def check():
            r = list(regs)
            if tagged:
                if len(r) == 1:
                    A(f"v_cmp_ne_u32 vcc, {sTAG}, v{r[0]}")
                else:
                    A(f"v_xor_b32 v{tmp}, {sTAG}, v{r[0]}")
                    for q in r[1:]: A(f"v_bitop3_b32 v{tmp}, v{q}, {sTAG}, v{tmp} bitop3:0xbe")
                    A(f"v_cmp_ne_u32 vcc, 0, v{tmp}")
            else:
                max_tree_u32(tmp, r)
                A(f"v_cmp_eq_u32 vcc, -1, v{tmp}")
        A(f"s_mov_b32 {sSPIN}, {SPIN}")
        if first_issued:
            chk = lab("pchk"); A(f"s_branch {chk}")
        A(f"{lp}:")
        for l in loads: A(l)
        A("s_waitcnt vmcnt(0)")
        if first_issued: A(f"{chk}:")
        check()
        A(f"s_cbranch_vccz {dn}")
        A("s_mov_b64 exec, vcc")
        if sleep is None: sleep = pollsleep
        if sleep: A(f"s_sleep {sleep}")
        A(f"s_sub_u32 {sSPIN}, {sSPIN}, 1")
        A(f"s_cbranch_scc0 {lp}")
        A(f"{dn}:")
        A("s_mov_b64 exec, -1")
    def mstore(instrs):
        if not fast:
            for i in instrs: A(i + " sc1")
            return
        sl, dn = lab("slow"), lab("sdone")
        A(f"s_cbranch_scc0 {sl}")
        for i in instrs: A(i)
        A(f"s_branch {dn}")
        A(f"{sl}:")
        for i in instrs: A(i + " sc1")
        A(f"{dn}:")
    def x4frag(R, tmp, dst):
        for h in range(2):
            A(f"v_mov_b32_dpp v{tmp+h}, v{R+h} row_ror:8 row_mask:0xf bank_mask:0x3")
        for h in range(2):
            A(f"v_mov_b32_dpp v{R+h}, v{R+2+h} row_ror:8 row_mask:0xf bank_mask:0xc")
        for h in range(2):
            A(f"v_mov_b32_dpp v{R+2+h}, v{tmp+h} quad_perm:[0,1,2,3] row_mask:0xf bank_mask:0x3")
        for e in range(4):
            A(f"v_perm_b32 v{dst(e)}, v{R+2+(e>>1)}, v{R+(e>>1)}, {sSELHI if e&1 else sSELLO}")
    def in1slot(dst, tmp):
        if h1lay:
            A(f"s_and_b32 {dst}, {J_}, 4"); A(f"s_add_u32 {dst}, {dst}, {B_}"); A(f"s_lshl_b32 {dst}, {dst}, 3")
            A(f"s_and_b32 {tmp}, {J_}, 3"); A(f"s_add_u32 {dst}, {dst}, {tmp}"); A(f"s_lshl_b32 {dst}, {dst}, 5")
        else:
            A(f"s_lshl_b32 {dst}, {J_}, 6")
    def consts():
        A(f"s_mov_b32 {sHI}, 0xffff0000")
        A(f"s_mov_b32 {sSELLO}, 0x05040100"); A(f"s_mov_b32 {sSELHI}, 0x07060302")
        A(f"s_mov_b32 {sL2E}, {LOG2E:#x}")

    A(HEADER.rstrip())
    A(f"; @launch grid=(256,1,1) block=(512,1,1) lds={LDS_BYTES}")
    A("""; One fused launch, 256 workgroups (one per CU), 8 waves each. x = wg & 7 (kv head), j = wg >> 3.
; Final reduction: returning f32 atomics on {sum, count} pairs; the workgroup that arrives last writes the output.""")
    A('.amdgcn_target "amdgcn-amd-amdhsa--gfx950"')
    A(".text")
    if align:
        A(".p2align 12"); A(f".fill {0xD00//4}, 4, 0xbf810000")
    A(f".globl {KNAME}"); A(".p2align 8"); A(f".type {KNAME},@function"); A(f"{KNAME}:")
    stamp(0)
    if not head2: A("s_cmp_ge_u32 s2, 256"); A("s_cbranch_scc1 L_end")
    A("s_load_dwordx16 s[8:23], s[0:1], 0")
    A("s_load_dwordx8 s[24:31], s[0:1], 64")
    if head2: A("s_cmp_ge_u32 s2, 256"); A("s_cbranch_scc1 L_end")
    A("v_lshrrev_b32 v1, 6, v0")
    A("v_and_b32 v0, 63, v0")
    A(f"v_readfirstlane_b32 {W_}, v1")
    A(f"s_and_b32 {XX}, s2, 7")
    A(f"s_lshr_b32 {J_}, s2, 3")
    A("v_and_b32 v2, 15, v0")
    A("v_lshrrev_b32 v3, 4, v0")
    A("v_bfe_u32 v4, v0, 2, 2")
    A("v_and_b32 v5, 3, v0")
    A(f"s_lshr_b32 {B_}, {J_}, 3"); A(f"s_and_b32 {S_}, {J_}, 7")
    A(f"s_cmp_ge_u32 {W_}, 4"); A("s_cbranch_scc1 L_stream")

    vm = VM(A)
    X, XA, T, U, AF, BF, D = 16, 32, 40, 72, 104, 112, 144
    pk = lambda r: r[0] | r[1] << 8 | r[2] << 16 | r[3] << 24
    if remap == -1:
        A(f"s_mov_b32 {JA}, {J_}")
        A(f"s_mul_i32 {sFB}, {XX}, 7"); A(f"s_add_u32 {sFB}, {sFB}, 1"); A(f"s_lshr_b32 {sFB}, {sFB}, 1")
        A(f"s_mul_i32 {sFB}, {sFB}, 0x01010101"); A(f"s_add_u32 {sFB}, {sFB}, 0x03020100")
    else:
        A(f"s_lshr_b32 m0, {J_}, 2")
        for i in range(8): A(f"s_mov_b32 s{44+i}, {pk(PERM[4*i:4*i+4]):#x}")
        A(f"s_movrels_b32 {JA}, s44")
        A(f"s_mov_b32 m0, {XX}")
        for i in range(8): A(f"s_mov_b32 s{44+i}, {pk(BLK[i]):#x}")
        A(f"s_movrels_b32 {sFB}, s44")
        A(f"s_lshl_b32 {sT0}, {J_}, 3"); A(f"s_lshr_b32 {JA}, {JA}, {sT0}"); A(f"s_and_b32 {JA}, {JA}, 31")
    A(f"s_and_b32 {sKH}, {JA}, 1")
    A(f"s_lshr_b32 {sT0}, {JA}, 1")
    A(f"s_lshl_b32 {sT1}, {XX}, 3"); A(f"s_add_u32 {sT1}, {sT1}, {sT0}")
    A(f"s_lshl_b32 {sT2}, {JA}, 1"); A(f"s_and_b32 {sT2}, {sT2}, 24"); A(f"s_lshr_b32 {sT2}, {sFB}, {sT2}"); A(f"s_and_b32 {sT2}, {sT2}, 31")
    A(f"s_cmp_lt_u32 {JA}, 16")
    A(f"s_cselect_b32 {sCB}, {sT1}, {sT2}")
    A(f"s_movk_i32 {sT3}, 3584")
    A(f"s_cselect_b32 {sPITCH}, 8192, {sT3}")
    A(f"s_lshl_b32 {sT0}, {W_}, 10")
    A(f"v_lshl_add_u32 v6, v0, 4, {sT0}")
    A(f"s_lshl_b32 {sT0}, {sKH}, 2"); A(f"s_add_u32 {sT0}, {sT0}, {W_}"); A(f"s_lshl_b32 {sT0}, {sT0}, 6")
    A(f"v_lshl_add_u32 v7, v3, 4, {sT0}")
    A("v_lshlrev_b32 v8, 1, v7")
    A("v_lshl_add_u32 v8, v4, 10, v8")
    A(f"s_lshl_b32 {sT1}, {sCB}, 7")
    if ax4:
        A("v_and_b32 v9, 7, v0"); A("v_bfe_u32 v13, v0, 3, 1")
        A(f"v_lshl_add_u32 v10, v9, 4, {sT1}")
        A("v_add_u32 v7, v7, v13")
        A("v_lshl_add_u32 v13, v9, 1, v13")
        A(f"v_mad_u32_u24 v9, v7, {sPITCH}, v10")
        A(f"s_lshl_b32 {sPITCH}, {sPITCH}, 1")
        A("v_sub_u32 v13, v13, v2")
        A("v_lshl_add_u32 v7, v13, 4, v6")
    else:
        A(f"v_lshl_add_u32 v9, v2, 3, {sT1}")
        A(f"v_mad_u32_u24 v9, v7, {sPITCH}, v9")
    def zaddr():
        for i in range(4): A(f"v_mov_b32 v{U+i}, 0")
        A(f"s_lshl_b32 {sT0}, {XX}, {5+segsh}"); A(f"s_add_u32 {sT0}, {sT0}, {ACC}")
        A(f"v_lshrrev_b32 v{U+4}, 2, v0")
        A(f"v_lshl_add_u32 v{U+4}, v{U+4}, {segsh}, {sT0}")
        A(f"v_lshl_add_u32 v{U+4}, v5, 4, v{U+4}")
        A(f"v_add_u32 v{U+5}, {16 << segsh}, v{U+4}")
    def zstore():
        A(f"global_store_dwordx4 v{U+4}, {vr(U,4)}, {sWS} sc1")
        A(f"global_store_dwordx4 v{U+5}, {vr(U,4)}, {sWS} sc1")
    if zearly:
        zaddr()
        A(f"s_lshl_b32 s63, {J_}, 2"); A(f"s_add_u32 s63, s63, {W_}")
    A(f"s_getreg_b32 {sHB}, hwreg(HW_REG_XCC_ID, 0, 4)")
    A(f"s_bitset1_b32 {sHB}, 7")
    A(f"s_lshl_b32 {sT2}, {XX}, 5"); A(f"s_add_u32 {sT3}, {sT2}, {J_}")
    A(f"v_mov_b32 v10, {sT3}"); A(f"v_mov_b32 v11, {sHB}")
    A("v_and_b32 v12, 7, v0")
    A(f"v_lshl_add_u32 v12, v12, 2, {sT2}")
    A(f"s_lshl_b32 {sNOA}, {JA}, 3"); A(f"s_or_b32 {sNOA}, {sNOA}, {XX}")
    A(f"s_and_b32 {sNOA}, {sNOA}, 0xe1")
    A(f"s_bitcmp1_b32 {JA}, 1")
    if head2: A("s_mov_b64 exec, 1")
    A("s_waitcnt lgkmcnt(0)")
    if head2:
        A(f"global_store_byte v10, v11, {sDBG}")
        A("s_mov_b64 exec, -1")
        A(f"global_load_dwordx4 {vr(X,4)}, v6, {sX}")
    A(f"s_cselect_b64 {sTB}, {sU}, {sG}")
    A(f"s_cmp_lt_u32 {JA}, 16")
    A(f"s_cselect_b64 {sTB}, {sWQ}, {sTB}")
    if not nohello and not head2: A(f"global_store_byte v10, v11, {sDBG}")
    A(f"s_load_dword {sTAG}, {sWS}, {EPOCH:#x}")
    if zearly:
        A("s_cmp_lg_u32 s63, 2"); A("s_cbranch_scc1 L_noz")
        zstore()
        A("L_noz:")
    if not head2: A(f"global_load_dwordx4 {vr(X,4)}, v6, {sX}")
    vm.issue("x")
    A(f"s_cmp_eq_u32 {sNOA}, 0xe1"); A("s_cbranch_scc1 L_noA")
    if ax4:
        for i in range(8):
            A(f"global_load_dwordx4 {vr(T+4*i,4)}, v9, {sTB} {ntw}"); vm.issue(("t", i))
            if i < 7: A(f"v_add_u32 v9, {sPITCH}, v9")
    else:
      for jj in range(16):
        A(f"global_load_dwordx2 {vr(T+2*jj,2)}, v9, {sTB} {ntw}"); vm.issue(("t", jj))
        if jj < 15: A(f"v_add_u32 v9, {sPITCH}, v9")
    stamp(1)
    consts()
    A(f"v_mov_b32 v15, {L_CNT}"); A("v_mov_b32 v13, 0")
    A("ds_write_b32 v15, v13")
    vm.wait("x")
    stamp(2)
    for i in range(4): unpack(U+2*i, U+2*i+1, X+i)
    def wave_sum(dst):
        A(f"v_pk_add_f32 {vr(XA,2)}, {vr(XA,2)}, {vr(XA+2,2)}")
        A(f"v_add_f32 v{dst}, v{XA}, v{XA+1}")
        A(f"v_add_f32_dpp v{dst}, v{dst}, v{dst} quad_perm:[1,0,3,2] {DPPF}")
        A(f"v_add_f32_dpp v{dst}, v{dst}, v{dst} quad_perm:[2,3,0,1] {DPPF}")
        A(f"v_add_f32_dpp v{dst}, v{dst}, v{dst} row_ror:8 {DPPF}")
        A(f"v_add_f32_dpp v{dst}, v{dst}, v{dst} row_ror:4 {DPPF}")
        rows_reduce("v_add_f32", dst, XA+4)
        A(f"v_mul_f32 v{dst}, 0x3b000000, v{dst}")
    A(f"v_pk_add_f32 {vr(XA,2)}, {vr(U,2)}, {vr(U+2,2)}")
    A(f"v_pk_add_f32 {vr(XA+2,2)}, {vr(U+4,2)}, {vr(U+6,2)}")
    wave_sum(10)
    for i in range(4):
        A(f"v_pk_add_f32 {vr(U+8+2*i,2)}, {vr(U+2*i,2)}, v[10:11] op_sel_hi:[1,0] neg_lo:[0,1] neg_hi:[0,1]")
    A(f"v_pk_mul_f32 {vr(XA,2)}, {vr(U+8,2)}, {vr(U+8,2)}")
    A(f"v_pk_mul_f32 {vr(XA+2,2)}, {vr(U+10,2)}, {vr(U+10,2)}")
    A(f"v_pk_fma_f32 {vr(XA,2)}, {vr(U+12,2)}, {vr(U+12,2)}, {vr(XA,2)}")
    A(f"v_pk_fma_f32 {vr(XA+2,2)}, {vr(U+14,2)}, {vr(U+14,2)}, {vr(XA+2,2)}")
    wave_sum(11)
    A("v_cvt_pk_bf16_f32 v13, v10, v11")
    unpack(10, 11, 13)
    A(f"v_add_f32 v11, {EPS:#x}, v11")
    for i in range(4):
        A(f"v_pk_add_f32 {vr(U+2*i,2)}, {vr(U+2*i,2)}, v[10:11] op_sel_hi:[1,0] neg_lo:[0,1] neg_hi:[0,1]")
    A("v_cvt_pk_bf16_f32 v11, v11, v11")
    A("v_lshlrev_b32 v11, 16, v11")
    A("v_sqrt_f32 v11, v11")
    for i in range(4): A(f"v_cvt_pk_bf16_f32 v{X+i}, v{U+2*i}, v{U+2*i+1}")
    A("v_cvt_pk_bf16_f32 v11, v11, v11")
    A("v_lshlrev_b32 v11, 16, v11")
    A("v_rcp_f32 v10, v11")
    for i in range(4): unpack(U+2*i, U+2*i+1, X+i)
    for i in range(4):
        A(f"v_pk_mul_f32 {vr(U+2*i,2)}, {vr(U+2*i,2)}, v[10:11] op_sel_hi:[1,0]")
    for i in range(4): A(f"v_cvt_pk_bf16_f32 v{X+i}, v{U+2*i}, v{U+2*i+1}")
    A(f"ds_write_b128 v6, {vr(X,4)} offset:{L_X}")
    A("s_waitcnt lgkmcnt(0)")
    stamp(3)
    A("s_barrier")
    A(f"global_load_dword v14, v12, {sDBG} sc1"); vm.issue("mode")
    for i in range(2): A(f"ds_read_b128 {vr(AF+4*i,4)}, v8 offset:{L_X+16*i}")
    A("s_waitcnt lgkmcnt(0)")
    for blk in range(2):
        if ax4:
            for r in range(4):
                vm.wait(("t", 4*blk+r))
                x4frag(T+4*(4*blk+r), 10, lambda e: BF+16*blk+4*e+r)
        else:
          vm.wait(("t", 8*blk+7))
          for e in range(4):
            for r in range(4):
                A(f"v_perm_b32 v{BF+16*blk+4*e+r}, v{T+2*(8*blk+2*r+1)+(e>>1)}, v{T+2*(8*blk+2*r)+(e>>1)}, {sSELHI if e&1 else sSELLO}")
        for e in range(4):
            c = "0" if blk == 0 else vr(D+4*e,4)
            A(f"v_mfma_f32_16x16x32_bf16 {vr(D+4*e,4)}, {vr(AF+4*blk,4)}, {vr(BF+16*blk+4*e,4)}, {c}")
    A(f"ds_write2_b32 v{7 if ax4 else 6}, v{D}, v{D+4} offset0:0 offset1:1")
    A(f"ds_write2_b32 v{7 if ax4 else 6}, v{D+8}, v{D+12} offset0:2 offset1:3")
    if ldsync:
        A("v_mov_b32 v13, 1")
        A("s_mov_b64 exec, 1")
        A("ds_add_u32 v15, v13")
        A("s_mov_b64 exec, -1")
    A("s_branch L_B0s")
    A("L_noA:")
    stamp(1)
    consts()
    A("s_waitcnt vmcnt(0)")
    A("s_barrier")
    A(f"global_load_dword v14, v12, {sDBG} sc1")
    A("L_B0s:")
    A("s_waitcnt lgkmcnt(0)")
    stamp(4)
    stamp(5)
    A(f"s_mul_i32 {sTAG}, {sTAG}, 0x0019660d"); A(f"s_add_u32 {sTAG}, {sTAG}, 0x3c6ef35f")
    A(f"s_mul_i32 {sT0}, {sHB}, 0x01010101")
    A(f"s_cmp_eq_u32 {W_}, 1"); A("s_cbranch_scc1 L_w1a")
    A(f"s_cmp_eq_u32 {W_}, 2"); A("s_cbranch_scc1 L_w2a")
    A("s_waitcnt vmcnt(0)")
    A(f"v_cmp_ne_u32 vcc, {sT0}, v14")
    A(f"s_mov_b32 {sMODE}, vcc_lo")
    if nohello: A(f"s_mov_b32 {sMODE}, 0")
    if mixmode: A(f"s_and_b32 {sT1}, {J_}, {mixmode}"); A(f"s_or_b32 {sMODE}, {sMODE}, {sT1}")
    A(f"s_cmp_eq_u32 {W_}, 3"); A("s_cbranch_scc1 L_clear")
    A(f"s_cmp_eq_u32 {sNOA}, 0xe1"); A("s_cbranch_scc1 L_qduty")
    if ldsync:
        A("L_cnt:")
        A("ds_read_b32 v13, v15")
        A("s_waitcnt lgkmcnt(0)")
        A("v_cmp_ne_u32 vcc, 4, v13")
        A("s_cbranch_vccnz L_cnt")
    A("v_lshlrev_b32 v10, 4, v0")
    for w in range(4): A(f"ds_read_b128 {vr(X+4*w,4)}, v10 offset:{L_PA+1024*w}")
    A(f"s_lshl_b32 {sT0}, {XX}, 15"); A(f"s_lshl_b32 {sT1}, {sKH}, 12"); A(f"s_add_u32 {sT1}, {sT0}, {sT1}")
    A(f"s_and_b32 {sT2}, {sCB}, 7"); A(f"s_lshl_b32 {sT2}, {sT2}, 9"); A(f"s_add_u32 {sT1}, {sT1}, {sT2}")
    A(f"v_lshl_add_u32 v11, v2, 4, {sT1}")
    A("v_lshl_add_u32 v11, v3, 13, v11")
    A("v_add_u32 v12, 256, v11")
    A(f"s_cmp_lt_u32 {JA}, 16"); A("s_cbranch_scc1 L_pubq")
    A(f"s_bfe_u32 {sT1}, {JA}, 0x20002"); A(f"s_lshl_b32 {sT1}, {sT1}, 13"); A(f"s_add_u32 {sT0}, {sT0}, {sT1}")
    A(f"s_and_b32 {sT1}, {JA}, 3"); A(f"s_lshl_b32 {sT1}, {sT1}, 8"); A(f"s_add_u32 {sT0}, {sT0}, {sT1}"); A(f"s_add_u32 {sT0}, {sT0}, {GP}")
    A(f"v_lshl_add_u32 v11, v4, 11, {sT0}")
    A("v_lshl_add_u32 v11, v3, 6, v11")
    A("v_lshl_add_u32 v11, v5, 4, v11")
    A("v_add_u32 v12, 1024, v11")
    A("L_pubq:")
    for i in range(4): A(f"v_mov_b32 v{XA+2*i+1}, {sTAG}")
    A(f"s_cmp_eq_u32 {sMODE}, 0")
    A("s_waitcnt lgkmcnt(0)")
    for h in range(2):
        A(f"v_pk_add_f32 {vr(X+2*h,2)}, {vr(X+2*h,2)}, {vr(X+4+2*h,2)}")
        A(f"v_pk_add_f32 {vr(X+8+2*h,2)}, {vr(X+8+2*h,2)}, {vr(X+12+2*h,2)}")
    for i in range(4): A(f"v_add_f32 v{XA+2*i}, v{X+i}, v{X+8+i}")
    if "p" not in skip:
        if pubsc1:
            A(f"global_store_dwordx4 v11, {vr(XA,4)}, {sWS} sc1"); A(f"global_store_dwordx4 v12, {vr(XA+4,4)}, {sWS} sc1")
        else:
            mstore([f"global_store_dwordx4 v11, {vr(XA,4)}, {sWS}", f"global_store_dwordx4 v12, {vr(XA+4,4)}, {sWS}"])
    A("s_waitcnt vmcnt(0)")
    A("L_qduty:")
    stamp(6)
    A(f"s_lshl_b32 {sT0}, {XX}, 2"); A(f"s_add_u32 {sT0}, {sT0}, {B_}"); A(f"s_lshl_b32 {sT0}, {sT0}, 13"); A(f"s_add_u32 {sT0}, {sT0}, {QP+4096}")
    A(f"v_lshl_add_u32 v10, v0, 4, {sT0}")
    if "q" not in skip:
        poll([f"global_load_dwordx4 {vr(U+4*i,4)}, v10, {sWS} offset:{1024*i-4096} sc1" for i in range(8)], range(U+1, U+32, 2), 11, tagged=True)
    for i in range(8): A(f"v_add_f32 v{U+2*i}, v{U+2*i}, v{U+16+2*i}")
    for h in range(4): A(f"v_cvt_pk_bf16_f32 v{X+h}, v{U+4*h}, v{U+4*h+2}")
    A("v_and_b32 v10, 32, v0"); A("v_and_b32 v11, 1, v3")
    A("v_add_u32 v10, v10, v11")
    A("v_lshl_add_u32 v10, v2, 1, v10")
    A("v_lshlrev_b32 v10, 2, v10")
    A(f"ds_write2st64_b32 v10, v{X}, v{X+1} offset0:{L_Q//256} offset1:{L_Q//256+1}")
    A(f"ds_write2st64_b32 v10, v{X+2}, v{X+3} offset0:{L_Q//256+2} offset1:{L_Q//256+3}")
    A("s_branch L_B1s")
    A("L_w1a:")
    if prefetch:
        A(f"s_cmp_lg_u32 {J_}, 31"); A("s_cbranch_scc1 L_B1s")
        A(f"s_getpc_b64 {sSAVE}")
        A("L_pc:")
        A("v_lshlrev_b32 v10, 7, v0")
        A("v_add_u32 v11, 0x2000, v10")
        A("v_min_u32 v10, L_end-L_pc, v10")
        A("v_min_u32 v11, L_end-L_pc, v11")
        A(f"global_load_dword v250, v10, {sSAVE}")
        A(f"global_load_dword v251, v11, {sSAVE}")
    A("s_branch L_B1s")
    A("L_w2a:")
    A(f"s_cmp_lg_u32 {J_}, 0"); A("s_cbranch_scc1 " + ("L_pad" if padT else "L_B1s"))
    if not zearly:
        zaddr(); zstore()
    if outtouch:
        A(f"s_lshl_b32 {sT0}, {XX}, 7")
        A(f"v_lshl_add_u32 v12, v5, 10, {sT0}")
        A(f"global_load_dword v248, v12, {sOUT}")
    A(f"s_lshl_b32 {sT0}, {XX}, 7"); A(f"s_add_u32 {sT0}, {sT0}, {ZF}")
    A(f"v_lshl_add_u32 v12, v2, 2, {sT0}"); A(f"v_mov_b32 v13, {sTAG}")
    A("s_waitcnt vmcnt(0)")
    A("s_mov_b64 exec, 0xffff")
    A(f"global_store_dword v12, v13, {sWS} sc1")
    A("s_mov_b64 exec, -1")
    if not padT: A("s_branch L_B1s")
    if padT:
        A("L_pad:")
        A(f"s_getpc_b64 {sSAVE}")
        A("L_pc2:")
        A(f"s_lshl_b32 {sT0}, s2, 2"); A(f"s_add_u32 {sT0}, {sT0}, L_tab-L_pc2"); A("s_add_u32 s48, s48, s40"); A("s_addc_u32 s49, s49, 0")
        A(f"s_load_dword {sT1}, {sSAVE}, 0")
        A("v_lshlrev_b32 v10, 6, v0")
        A("s_waitcnt lgkmcnt(0)")
        A("L_padl:")
        A(f"s_sub_u32 {sT1}, {sT1}, 1"); A("s_cbranch_scc1 L_B1s")
        A(f"global_load_dword v249, v10, {sX} sc1")
        A("s_branch L_padl")
    A("L_clear:")
    A(f"v_mov_b32 v13, {sMODE}"); A(f"v_mov_b32 v15, {L_MODE}")
    A("ds_write_b32 v15, v13")
    for i in range(4): A(f"v_mov_b32 v{X+i}, -1")
    in1slot(sT1, sT0)
    A(f"s_lshl_b32 {sT0}, {XX}, 15"); A(f"s_add_u32 {sT0}, {sT0}, {sT1}"); A(f"s_add_u32 {sT0}, {sT0}, {IN1}")
    A("v_lshrrev_b32 v10, 2, v0")
    A(f"v_lshl_add_u32 v10, v10, 11, {sT0}")
    if h1lay:
        A("v_and_b32 v11, 1, v0"); A("v_bfe_u32 v12, v0, 1, 1")
        A("v_lshl_add_u32 v10, v11, 4, v10"); A("v_lshl_add_u32 v10, v12, 7, v10")
    else:
        A("v_lshl_add_u32 v10, v5, 4, v10")
    A(f"s_lshl_b32 {sT0}, {XX}, 12"); A(f"s_lshl_b32 {sT1}, {J_}, 5"); A(f"s_add_u32 {sT0}, {sT0}, {sT1}"); A(f"s_add_u32 {sT0}, {sT0}, {ST}")
    A("v_bfe_u32 v11, v0, 3, 2"); A("v_and_b32 v12, 7, v0")
    A(f"v_lshl_add_u32 v11, v11, 10, {sT0}")
    A("v_lshl_add_u32 v11, v12, 2, v11")
    A(f"s_lshl_b32 {sT1}, {XX}, 5"); A(f"s_add_u32 {sT1}, {sT1}, {J_}"); A(f"s_lshl_b32 {sT1}, {sT1}, 2"); A(f"s_add_u32 {sT1}, {sT1}, {CLR}")
    A(f"v_mov_b32 v12, {sT1}"); A(f"v_mov_b32 v13, {sTAG}")
    A(f"s_cmp_eq_u32 {sMODE}, 0")
    if "c" not in skip:
        mstore([f"global_store_dwordx4 v10, {vr(X,4)}, {sWS}", f"global_store_dword v11, v{X}, {sWS}"])
    A("s_waitcnt vmcnt(0)")
    A("s_mov_b64 exec, 1")
    mstore([f"global_store_dword v12, v13, {sWS}"])
    A("s_mov_b64 exec, -1")
    A("L_B1s:")
    A("s_waitcnt lgkmcnt(0)")
    stamp(7)
    A("s_barrier")
    AD, AO, AS, AH1, AH2, AOUT, AIN2, ALW, XV = 160, 161, 162, 163, 164, 165, 166, 167, 168
    STT, WD, WO, HF, WT, BD, BO, DH, OA, DO = 24, 28, 36, 52, 56, 64, 72, 88, 104, 112
    Y = 144
    A(f"s_lshl_b32 {sRB}, {XX}, 2"); A(f"s_add_u32 {sRB}, {sRB}, {B_}")
    A(f"s_lshl_b32 {sT3}, {sRB}, 2"); A(f"s_add_u32 {sT3}, {sT3}, {W_}"); A(f"s_lshl_b32 {sT3}, {sT3}, 11")
    A(f"s_lshl_b32 {sT0}, {XX}, 7"); A(f"s_add_u32 {sT0}, {sT0}, {CLR}")
    A(f"v_lshl_add_u32 v13, v0, 2, {sT0}")
    A(f"s_lshl_b32 {sT0}, {S_}, 7"); A(f"s_add_u32 {sT0}, {sT0}, {ZF}")
    A("s_mov_b32 exec_lo, 0")
    A(f"v_mov_b32 v13, {sT0}")
    A("s_mov_b32 exec_lo, -1")
    cl = [f"global_load_dword v{Y+8}, v13, {sWS} sc1"]
    A(f"s_add_u32 {sT0}, {sT3}, {GP}")
    A(f"v_lshl_add_u32 v10, v5, 8, {sT0}")
    A("v_lshl_add_u32 v10, v4, 6, v10")
    A("v_lshl_add_u32 v10, v3, 4, v10")
    hl = [f"global_load_dwordx4 {vr(Y+4*i,4)}, v10, {sWS} offset:{1024*i} sc1" for i in range(2)]
    A(f"v_mov_b32 v{HF}, 0"); A(f"v_mov_b32 v{HF+1}, 0")
    A(f"s_and_b32 {sNOA}, s2, 0xc1")
    A(f"s_cmp_eq_u32 {sNOA}, 0xc1"); A("s_cbranch_scc1 L_noh")
    if "h" not in skip:
        poll(cl + hl, [Y+8, Y+1, Y+3, Y+5, Y+7], 11, tagged=True)
    for i in range(4): A(f"v_add_f32_dpp v{X+i}, v{Y+2*i}, v{Y+2*i} quad_perm:[1,0,3,2] {DPPF}")
    for i in range(2): A(f"v_cvt_pk_bf16_f32 v{X+4+i}, v{X+2*i}, v{X+2*i+1}")
    for i in range(2): unpack(X+2*i, X+2*i+1, X+4+i)
    for i in range(4): A(f"v_mul_f32 v{X+4+i}, {sL2E}, v{X+i}")
    for i in range(4): A(f"v_exp_f32 v{X+4+i}, -v{X+4+i}")
    for i in range(4): A(f"v_add_f32 v{X+4+i}, 1.0, v{X+4+i}")
    for i in range(4): A(f"v_rcp_f32 v{X+4+i}, v{X+4+i}")
    for i in range(4): A(f"v_mul_f32 v{X+4+i}, v{X+i}, v{X+4+i}")
    for i in range(2): A(f"v_cvt_pk_bf16_f32 v{Y+i}, v{X+4+2*i}, v{X+5+2*i}")
    for i in range(2): unpack(X+4+2*i, X+5+2*i, Y+i)
    for i in range(4): A(f"v_mul_f32_dpp v{X+4+i}, v{X+i}, v{X+4+i} quad_perm:[2,3,0,1] {DPPF}")
    A("v_cmp_eq_u32 vcc, 0, v5")
    for i in range(2): A(f"v_cvt_pk_bf16_f32 v{HF+i}, v{X+4+2*i}, v{X+5+2*i}")
    for i in range(2): A(f"v_cndmask_b32 v{HF+i}, 0, v{HF+i}, vcc")
    A("s_branch L_hdone")
    A("L_noh:")
    if "h" not in skip:
        poll(cl, [Y+8], 11, tagged=True)
    A("L_hdone:")
    A(f"s_lshl_b32 {sT1}, {S_}, 7")
    if ox4:
        A("v_and_b32 v13, 7, v0"); A("v_bfe_u32 v15, v0, 3, 1")
        A(f"v_lshl_add_u32 v10, v13, 4, {sT1}")
    else:
        A(f"v_lshl_add_u32 v10, v2, 3, {sT1}")
    A(f"s_lshl_b32 {sT2}, {B_}, 3"); A(f"s_lshr_b32 {sT2}, {sFB}, {sT2}"); A(f"s_and_b32 {sT2}, {sT2}, 31"); A(f"s_lshl_b32 {sT2}, {sT2}, 2"); A(f"s_add_u32 {sT2}, {sT2}, {W_}"); A(f"s_lshl_b32 {sT2}, {sT2}, 14")
    A(f"v_lshl_add_u32 v11, v3, 12, {sT2}")
    if ox4: A("v_lshl_add_u32 v11, v15, 10, v11")
    A(f"v_add_u32 v{AD}, v11, v10")
    A(f"s_lshl_b32 {sT2}, {sRB}, 7")
    A(f"s_lshl_b32 {sT0}, {W_}, 1"); A(f"s_add_u32 {sT2}, {sT2}, {sT0}")
    A("v_and_b32 v11, 1, v3"); A("v_lshrrev_b32 v12, 1, v3")
    A("v_lshl_add_u32 v11, v11, 6, v12")
    A(f"v_add_u32 v11, {sT2}, v11")
    if ox4: A("v_lshl_add_u32 v11, v15, 3, v11")
    A(f"v_lshl_add_u32 v{AO}, v11, 10, v10")
    A(f"s_lshl_b32 {sT2}, {sRB}, 10"); A(f"s_add_u32 {sT2}, {sT2}, {ST}")
    A(f"v_lshl_add_u32 v{AS}, v0, 4, {sT2}")
    A(f"s_add_u32 {sT2}, {sT3}, {IN1}")
    if h1lay:
        A(f"v_lshl_add_u32 v11, v4, 8, {sT2}")
        A("v_lshl_add_u32 v11, v5, 5, v11")
        A("v_and_b32 v12, 1, v3"); A("v_lshl_add_u32 v11, v12, 4, v11")
        A("v_lshrrev_b32 v12, 1, v3"); A(f"v_lshl_add_u32 v{AH1}, v12, 7, v11")
    else:
        A(f"v_lshl_add_u32 v11, v4, 9, {sT2}")
        A("v_lshl_add_u32 v11, v5, 6, v11")
        A(f"v_lshl_add_u32 v{AH1}, v3, 4, v11")
    A(f"s_lshl_b32 {sT2}, {S_}, 2"); A(f"s_add_u32 {sT2}, {sT2}, {W_}"); A(f"s_lshl_b32 {sT2}, {sT2}, {3+segsh}"); A(f"s_add_u32 {sT2}, {sT2}, {ACC}")
    A(f"v_lshl_add_u32 v11, v3, {segsh}, {sT2}")
    A(f"v_lshl_add_u32 v{AH2}, v2, 2, v11")
    A(f"s_lshl_b32 {sT1}, {W_}, 10")
    if ox4:
        A("v_lshl_add_u32 v13, v13, 1, v15")
        A("v_lshl_add_u32 v13, v3, 4, v13")
        A(f"v_lshl_add_u32 v{ALW}, v13, 4, {sT1}")
    else:
        A(f"v_lshl_add_u32 v{ALW}, v0, 4, {sT1}")
    A(f"s_lshl_b32 {sT0}, {W_}, 8")
    A(f"v_lshl_add_u32 v{AIN2}, v0, 2, {sT0}")
    A(f"s_lshl_b32 {sT0}, {S_}, 7"); A(f"s_add_u32 {sT0}, {sT0}, {sT1}")
    A(f"v_lshl_add_u32 v{AOUT}, v0, 1, {sT0}")
    A(f"global_load_ushort v{XV}, v{AOUT}, {sX}")
    A("s_mov_b32 s54, 0xaaaaaaaa"); A("s_mov_b32 s55, 0xaaaaaaaa")
    for r in range(8): A(f"v_mov_b32 v{WD+r}, 0")
    A(f"s_movk_i32 {sT0}, {0x4000 if ox4 else 0x2000}")
    A(f"s_cmp_eq_u32 {sNOA}, 0xc1")
    if wdfirst:
        A("s_cbranch_scc1 L_nowd0")
        for jj in range(4):
            A(f"global_load_dwordx2 {vr(WD+2*jj,2)}, v{AD}, {sWD} offset:{1024*jj} {ntw}")
        A("L_nowd0:")
        for jj in range(woearly):
            A(f"global_load_dwordx2 {vr(WO+2*jj,2)}, v{AO}, {sWO} {ntw}")
            if jj < 7: A(f"v_add_u32 v{AO}, {sT0}, v{AO}")
        A("s_cmp_eq_u32 0, 0")
    stamp(8)
    A("s_barrier")
    vm = VM(A)
    stl = f"global_load_dwordx4 {vr(STT,4)}, v{AS}, {sWS} sc1"
    h1l = [f"global_load_dwordx4 {vr(OA+4*sh,4)}, v{AH1}, {sWS} offset:{(1024 if h1lay else 256)*sh} sc1" for sh in range(2)]
    if st1:
        A("s_cselect_b32 s63, 1, 0")
        A(f"s_cmp_lg_u32 {W_}, 0"); A("s_cbranch_scc1 L_nost")
        A(stl)
        A("L_nost:")
        A("s_cmp_eq_u32 s63, 1")
        vm.issue("st")
    else:
        A(stl); vm.issue("st")
    A("s_cbranch_scc1 L_nowd")
    if ox4:
        for i in range(2):
            A(f"global_load_dwordx4 {vr(WD+4*i,4)}, v{AD}, {sWD} offset:{2048*i} {ntw}")
        A("L_nowd:")
        for i in range(4):
            A(f"global_load_dwordx4 {vr(WO+4*i,4)}, v{AO}, {sWO} {ntw}"); vm.issue(("wo", 2*i+1))
            if i < 3: A(f"v_add_u32 v{AO}, {sT0}, v{AO}")
    else:
      for jj in range(4):
        A(f"global_load_dwordx2 {vr(WD+2*jj,2)}, v{AD}, {sWD} offset:{1024*jj} {ntw}")
      A("L_nowd:")
      for jj in range(woearly, defer):
        A(f"global_load_dwordx2 {vr(WO+2*jj,2)}, v{AO}, {sWO} {ntw}"); vm.issue(("wo", jj))
        if jj < 7: A(f"v_add_u32 v{AO}, {sT0}, v{AO}")
    stamp(9)
    if st1:
        A("v_lshlrev_b32 v10, 4, v0")
        A(f"s_cmp_lg_u32 {W_}, 0"); A("s_cbranch_scc1 L_B3s")
        A("s_cmp_eq_u32 s63, 1"); A("s_cbranch_scc1 L_stw8")
        A("s_waitcnt vmcnt(12)"); A("s_branch L_stchk")
        A("L_stw8:")
        A("s_waitcnt vmcnt(8)")
        A("L_stchk:")
        poll([stl], range(STT, STT+4), 11, first_issued=True)
        A(f"ds_write_b128 v10, {vr(STT,4)} offset:{L_Q}")
        A("s_waitcnt lgkmcnt(0)")
        A("L_B3s:")
    A("s_barrier")
    if st1:
        A(f"ds_read_b128 {vr(STT,4)}, v10 offset:{L_Q}")
    if defer < 8:
        A("s_barrier")
        for jj in range(defer, 8):
            A(f"global_load_dwordx2 {vr(WO+2*jj,2)}, v{AO}, {sWO} {ntw}"); vm.issue(("wo", jj))
            if jj < 7: A(f"v_add_u32 v{AO}, {sT0}, v{AO}")
    vm.wait("st")
    if st1: A("s_waitcnt lgkmcnt(0)")
    else: poll([stl], range(STT, STT+4), 11, first_issued=True)
    m0, l0, m1, l1 = STT, STT+1, STT+2, STT+3
    A(f"v_max_f32 v10, v{m0}, v{m1}")
    def wdperm(e):
        if ox4:
            if e < 2: x4frag(WD+4*e, 172, lambda q: BD+2*q+e)
            return
        for r in range(2):
            A(f"v_perm_b32 v{BD+2*e+r}, v{WD+2*(2*r+1)+(e>>1)}, v{WD+2*(2*r)+(e>>1)}, {sSELHI if e&1 else sSELLO}")
    wdperm(0)
    A(f"v_max_f32_dpp v10, v10, v10 quad_perm:[1,0,3,2] {DPPF}")
    wdperm(1)
    A(f"v_max_f32_dpp v11, v10, v10 quad_perm:[2,3,0,1] {DPPF}")
    wdperm(2)
    A(f"v_max_f32_dpp v11, v11, v11 row_ror:4 {DPPF}")
    wdperm(3)
    A(f"v_max_f32_dpp v11, v11, v11 row_ror:8 {DPPF}")
    A(f"v_sub_f32 v{m0}, v{m0}, v11"); A(f"v_sub_f32 v{m1}, v{m1}, v11"); A("v_sub_f32 v10, v10, v11")
    A(f"v_mul_f32 v{m0}, {sL2E}, v{m0}"); A(f"v_mul_f32 v{m1}, {sL2E}, v{m1}"); A(f"v_mul_f32 v10, {sL2E}, v10")
    A(f"v_exp_f32 v{m0}, v{m0}"); A(f"v_exp_f32 v{m1}, v{m1}"); A("v_exp_f32 v10, v10")
    A(f"v_mul_f32 v12, v{m0}, v{l0}")
    A(f"v_fmac_f32 v12, v{m1}, v{l1}")
    def dhm(e): A(f"v_mfma_f32_16x16x16_bf16 {vr(DH+4*e,4)}, {vr(HF,2)}, {vr(BD+2*e,2)}, 0")
    dhm(0)
    A(f"v_add_f32_dpp v12, v12, v12 quad_perm:[1,0,3,2] {DPPF}")
    dhm(1)
    A(f"v_add_f32_dpp v12, v12, v12 quad_perm:[2,3,0,1] {DPPF}")
    dhm(2)
    A(f"v_add_f32_dpp v12, v12, v12 row_ror:8 {DPPF}")
    dhm(3)
    A(f"v_add_f32_dpp v12, v12, v12 row_ror:4 {DPPF}")
    A("v_rcp_f32 v12, v12")
    A("v_mul_f32 v10, v10, v12")
    for s in range(8): A(f"v_mov_b32_dpp v{WT+s}, v10 row_newbcast:{2*s} {DPPF}")
    stamp(10)
    def woperm(r):
        if ox4: x4frag(WO+4*r, 172, lambda e: BO+4*e+r)
        else:
            for e in range(4):
                A(f"v_perm_b32 v{BO+4*e+r}, v{WO+2*(2*r+1)+(e>>1)}, v{WO+2*(2*r)+(e>>1)}, {sSELHI if e&1 else sSELLO}")
    h1at = {0: 3, 1: 1, 2: -1, 3: 2}[h1early]
    if h1at < 0:
        for l in h1l: A(l); vm.issue("h1")
    for r in range(4):
        vm.wait(("wo", 2*r+1))
        if r == h1at:
            for l in h1l: A(l); vm.issue("h1")
        woperm(r)
    stamp(11)
    if h1skip and not h1pipe:
        A(f"s_mov_b32 {sSPIN}, {SPIN}")
        A("L_h1:")
        A("s_waitcnt vmcnt(0)")
        A(f"v_max3_u32 v10, v{OA}, v{OA+1}, v{OA+2}")
        A(f"v_max3_u32 v11, v{OA+4}, v{OA+5}, v{OA+6}")
        A(f"v_max_u32 v10, v10, v{OA+3}")
        A(f"v_max_u32 v11, v11, v{OA+7}")
        A("v_cmp_eq_u32 s[58:59], -1, v10")
        A("v_cmp_eq_u32 vcc, -1, v11")
        A("s_or_b64 s[60:61], s[58:59], vcc")
        A("s_cbranch_scc0 L_h1d")
        A("s_mov_b64 exec, s[58:59]")
        A("s_cbranch_execz L_h1a")
        A(h1l[0])
        A("L_h1a:")
        A("s_mov_b64 exec, vcc")
        A("s_cbranch_execz L_h1b")
        A(h1l[1])
        A("L_h1b:")
        A("s_mov_b64 exec, -1")
        A(f"s_sub_u32 {sSPIN}, {sSPIN}, 1")
        A("s_cbranch_scc0 L_h1")
        A("s_waitcnt vmcnt(0)")
        A("L_h1d:")
    elif not h1pipe:
        vm.wait_all()
        poll(h1l, range(OA, OA+8), 11, first_issued=True)
    else:
        OB = 176
        h1b = [f"global_load_dwordx4 {vr(OB+4*sh,4)}, v{AH1}, {sWS} offset:{(1024 if h1lay else 256)*sh} sc1" for sh in range(2)]
        A(f"s_mov_b32 {sSPIN}, {SPIN}")
        for l in h1b: A(l)
        A("s_mov_b64 s[58:59], -1"); A("s_mov_b64 s[60:61], -1")
        A("L_hp:")
        A("s_mov_b64 exec, s[58:59]")
        A("s_waitcnt vmcnt(2)")
        max_tree_u32(11, range(OA, OA+8))
        A("v_cmp_eq_u32 vcc, -1, v11")
        A("s_cbranch_vccz L_hpa")
        A("s_mov_b64 exec, vcc")
        for l in h1l: A(l)
        A("s_mov_b64 s[58:59], vcc")
        A("s_mov_b64 exec, s[60:61]")
        A("s_waitcnt vmcnt(2)")
        max_tree_u32(11, range(OB, OB+8))
        A("v_cmp_eq_u32 vcc, -1, v11")
        A("s_cbranch_vccz L_hpb")
        A("s_mov_b64 exec, vcc")
        for l in h1b: A(l)
        A("s_mov_b64 s[60:61], vcc")
        A(f"s_sub_u32 {sSPIN}, {sSPIN}, 1")
        A("s_cbranch_scc0 L_hp")
        A("L_hpb:")
        A("s_mov_b64 exec, -1")
        for sh in range(2):
            for e in range(4):
                A(f"v_mfma_f32_16x16x32_bf16 {vr(DO+16*sh+4*e,4)}, {vr(OB+4*sh,4)}, {vr(BO+4*e,4)}, 0")
        A("s_nop 0")
        A("s_branch L_hpf")
        A("L_hpa:")
        A("s_mov_b64 exec, -1")
    stamp(12)
    if fine: A("s_memtime s[72:73]")
    def om(sh, e): A(f"v_mfma_f32_16x16x32_bf16 {vr(DO+16*sh+4*e,4)}, {vr(OA+4*sh,4)}, {vr(BO+4*e,4)}, 0")
    def of(sh, e, hh): A(f"v_pk_fma_f32 {vr(DH+4*e,2)}, {vr(DO+16*sh+4*e+2*hh,2)}, {vr(WT+4*sh+2*hh,2)}, {vr(DH+4*e,2)}")
    if h1pipe:
        for sh in range(2):
            for e in range(4): om(sh, e)
        A("s_nop 0")
        A("L_hpf:")
        for sh in range(2):
            for hh in range(2):
                for e in range(4): of(sh, e, hh)
        for e in range(4): A(f"v_add_f32 v{STT+e}, v{DH+4*e}, v{DH+4*e+1}")
    elif sched == 2:
        def pf(sh, e, r): A(f"v_fmac_f32 v{DH+4*e+(r&1)}, v{DO+16*sh+4*e+r}, v{WT+4*sh+r}")
        for e in range(4): om(0, e)
        om(1, 0); om(1, 1)
        pf(0, 0, 0); pf(0, 0, 1); om(1, 2); pf(0, 0, 2); pf(0, 0, 3); om(1, 3)
        for hh in range(2):
            for e in range(1, 4): of(0, e, hh)
        for hh in range(2):
            for e in range(4): of(1, e, hh)
        for e in range(4): A(f"v_add_f32 v{STT+e}, v{DH+4*e}, v{DH+4*e+1}")
    elif sched == 3:
        for sh in range(2):
            for e in range(4): om(sh, e)
        for e in range(4): of(0, e, 0)
        for e in range(4): A(f"v_pk_mul_f32 {vr(DH+4*e+2,2)}, {vr(DO+4*e+2,2)}, {vr(WT+2,2)}")
        for e in range(4): of(1, e, 0)
        for e in range(4): A(f"v_pk_fma_f32 {vr(DH+4*e+2,2)}, {vr(DO+16+4*e+2,2)}, {vr(WT+6,2)}, {vr(DH+4*e+2,2)}")
        for e in range(4): A(f"v_add_f32 v{STT+e}, v{DH+4*e}, v{DH+4*e+1}")
        for e in range(4): A(f"v_add_f32 v{DH+4*e+2}, v{DH+4*e+2}, v{DH+4*e+3}")
        for e in range(4): A(f"v_add_f32 v{STT+e}, v{STT+e}, v{DH+4*e+2}")
    elif sched:
        for e in range(4): om(0, e)
        for e in range(4):
            om(1, e); of(0, e, 0); of(0, e, 1)
        for e in range(4):
            of(1, e, 0); of(1, e, 1)
            if e: A(f"v_add_f32 v{STT+e-1}, v{DH+4*(e-1)}, v{DH+4*(e-1)+1}")
        A(f"v_add_f32 v{STT+3}, v{DH+12}, v{DH+13}")
    else:
        for sh in range(2):
            for e in range(4): om(sh, e)
        for sh in range(2):
            for hh in range(2):
                for e in range(4): of(sh, e, hh)
        for e in range(4): A(f"v_add_f32 v{STT+e}, v{DH+4*e}, v{DH+4*e+1}")
    if fine: A("s_memtime s[66:67]")
    A(f"ds_write_b128 v{ALW}, {vr(STT,4)} offset:{L_PA}")
    A("s_waitcnt lgkmcnt(0)")
    if fine: A("s_memtime s[68:69]")
    A("s_barrier")
    if fine: A("s_memtime s[70:71]")
    A(f"ds_read2st64_b32 {vr(DO,2)}, v{AIN2} offset0:0 offset1:4")
    A(f"ds_read2st64_b32 {vr(DO+2,2)}, v{AIN2} offset0:8 offset1:12")
    A(f"v_lshlrev_b32 v{XV}, 16, v{XV}")
    A("s_waitcnt lgkmcnt(0)")
    if fine: A("s_memtime s[76:77]")
    A(f"v_pk_add_f32 {vr(DO,2)}, {vr(DO,2)}, {vr(DO+2,2)}")
    A(f"v_add_f32 v{DO}, v{DO}, v{DO+1}")
    A(f"v_cndmask_b32 v{STT}, v{DO}, 1.0, s[54:55]")
    A(f"v_cndmask_b32 v{STT+1}, 1.0, v{DO}, s[54:55]")
    A(f"global_atomic_add_f32 v{STT+2}, v{AH2}, v{STT}, {sWS} sc0 sc1")
    A(f"global_atomic_add_f32 v{STT+3}, v{AH2}, v{STT+1}, {sWS} offset:{4 << segsh} sc0 sc1")
    stamp(13)
    if fine: A("s_memtime s[78:79]")
    A(f"v_add_f32 v{XV}, v{XV}, v{DO}")
    A(f"s_mov_b32 {sT0}, 0x41f80000")
    A("s_waitcnt vmcnt(1)")
    if fine: A("s_memtime s[80:81]")
    A(f"v_cmp_eq_f32 vcc, {sT0}, v{STT+2}")
    A("s_and_b64 vcc, vcc, s[54:55]")
    A("s_lshr_b64 s[58:59], vcc, 1")
    A("s_waitcnt vmcnt(0)")
    stamp(5)
    if fine: A("s_memtime s[82:83]")
    A(f"v_cmp_eq_f32 vcc, {sT0}, v{STT+3}")
    A(f"v_cndmask_b32 v{STT+2}, v{STT+2}, v{STT+3}, s[54:55]")
    A("s_andn2_b64 vcc, vcc, s[54:55]")
    A(f"v_add_f32 v{XV}, v{XV}, v{STT+2}")
    A("s_lshl_b64 vcc, vcc, 1")
    A(f"v_cvt_pk_bf16_f32 v{XV}, v{XV}, v{XV}")
    LF = "L_fin" if (diag or probe >= 0) else "L_svcend"
    A("s_or_b64 exec, vcc, s[58:59]")
    A(f"s_cbranch_execz {LF}")
    A(f"global_store_short v{AOUT}, v{XV}, {sOUT}")
    A(f"s_or_b32 {sT0}, {S_}, {W_}"); A(f"s_cbranch_scc1 {LF}")
    A("s_bitcmp1_b32 s58, 0"); A(f"s_cbranch_scc0 {LF}")
    A("s_mov_b64 exec, 0xffffffff")
    A(f"s_mov_b32 {sT0}, {EPOCH}"); A(f"v_lshl_add_u32 v10, v0, 2, {sT0}"); A(f"v_mov_b32 v11, {sTAG}")
    A(f"global_store_dword v10, v11, {sWS}")
    if LF == "L_fin": A("s_branch L_fin")
    else: A("L_svcend:"); A("s_endpgm")

    A("L_stream:")
    vm = VM(A)
    KR, VF, S, Q, QD, O, P, TM = 16, 144, 192, 200, 204, 236, 244, 248
    def kreg(i): return KR + 4*i
    def vreg(i): return VF + 4*i if i < nVf else KR + 4*(i - nVf)
    AT = [KR + 4*(32 - nVf), KR + 4*(32 - nVf) + 16]
    assert nVf >= 8 and nVf <= 12
    A(f"s_sub_u32 {W_}, {W_}, 4")
    A(f"s_lshl_b32 {sT0}, {B_}, 3"); A(f"s_add_u32 {sT0}, {sT0}, {XX}"); A(f"s_lshl_b32 {sT0}, {sT0}, 22")
    A(f"s_lshl_b32 {sT1}, {S_}, 17"); A(f"s_add_u32 {sT0}, {sT0}, {sT1}"); A(f"s_add_u32 {sT0}, {sT0}, {12288*256}")
    A(f"s_lshl_b32 {sT1}, {W_}, 10")
    if swz == "xorj":
        A(f"s_lshl_b32 {sT2}, {J_}, 12"); A(f"s_add_u32 {sT1}, {sT1}, {sT2}")
    elif swz == "xor7":
        A(f"s_add_u32 {sT2}, {J_}, {XX}"); A(f"s_and_b32 {sT2}, {sT2}, 7"); A(f"s_lshl_b32 {sT2}, {sT2}, 12"); A(f"s_add_u32 {sT1}, {sT1}, {sT2}")
    A(f"v_lshl_add_u32 v6, v0, 4, {sT1}")
    A(f"v_lshl_add_u32 v7, v5, 4, {sT1}")
    A("v_lshl_add_u32 v7, v4, 8, v7")
    A("v_lshl_add_u32 v7, v3, 6, v7")
    A("s_waitcnt lgkmcnt(0)")
    A(f"s_add_u32 s10, s10, {sT0}"); A("s_addc_u32 s11, s11, 0")
    A(f"s_add_u32 s12, s12, {sT0}"); A("s_addc_u32 s13, s13, 0")
    stamp(1)
    if tlb:
        A("s_mov_b64 exec, 1")
        A(f"s_cmp_lg_u32 {W_}, 0"); A("s_cbranch_scc1 L_notlb")
        A(f"s_lshl_b32 {sT0}, {XX}, 19"); A(f"s_lshl_b32 {sT1}, {J_}, 14"); A(f"s_add_u32 {sT0}, {sT0}, {sT1}"); A(f"v_mov_b32 v8, {sT0}")
        A(f"s_mul_i32 {sT0}, {XX}, {224*1024}"); A(f"s_mul_i32 {sT1}, {J_}, 7168"); A(f"s_add_u32 {sT0}, {sT0}, {sT1}"); A(f"v_mov_b32 v9, {sT0}")
        A(f"s_lshl_b32 {sT0}, s2, 7"); A(f"s_add_u32 {sT0}, {sT0}, 0x180000"); A(f"v_mov_b32 v10, {sT0}")
        A(f"global_load_dword v252, v6, {sV} {nt}")
        A(f"global_load_dword v253, v8, {sWO} {nt}")
        A(f"global_load_dword v254, v9, {sWD} {nt}")
        A(f"global_load_dword v255, v10, {sWS} {nt}")
        A("L_notlb:")
        A("s_mov_b64 exec, -1")
    nld = [0]
    def load(which, i):
        t = 8 + (nld[0] & 1); nld[0] += 1
        src, base, r = (7, sK, kreg(i)) if which == "K" else (6, sV, vreg(i))
        if i == 0: t = src
        else: A(f"v_xor_b32 v{t}, {4096*i:#x}, v{src}")
        A(f"global_load_dwordx4 {vr(r,4)}, v{t}, {base} {nt}"); vm.issue((which, i))
    for i in range(nB0): load("K", i)
    stamp(4)
    A("s_barrier")
    stamp(5)
    for i in range(nB0, 32): load("K", i)
    for i in range(nVf): load("V", i)
    consts()
    A("v_lshlrev_b32 v10, 8, v5")
    A("v_lshl_add_u32 v10, v3, 6, v10")
    A("v_lshl_add_u32 v10, v4, 4, v10")
    A(f"v_mov_b32 v11, {L_MODE}")
    stamp(6)
    A("s_barrier")
    stamp(7)
    A(f"ds_read_b128 {vr(Q,4)}, v10 offset:{L_Q}")
    A("ds_read_b32 v11, v11")
    A("s_waitcnt lgkmcnt(0)")
    A(f"v_readfirstlane_b32 {sMODE}, v11")
    def extract(i):
        d = QD + 4*(i % 8); s = S + (i & 1) + 2*(i >> 3); t = (i >> 1) & 3
        ops = []; first = True
        for v in range(4):
            if v == t: continue
            n = 4*((t - v) % 4)
            src1 = d + t if first else s
            ops.append(f"v_add_f32_dpp v{s}, v{d+v}, v{src1} row_ror:{n} row_mask:0xf bank_mask:{1<<t:#x}")
            first = False
        return ops
    def qk(i):
        vm.wait(("K", i))
        A(f"v_mfma_f32_16x16x32_bf16 {vr(QD+4*(i%8),4)}, {vr(kreg(i),4)}, {vr(Q,4)}, 0")
    nv = nVf
    if "k" not in skip:
      for i in range(4): qk(i)
      for i in range(0, 32, 2):
        a, b = extract(i), extract(i+1)
        A(a[0]); A(b[0])
        if i + 4 < 32: qk(i+4)
        A(a[1]); A(b[1])
        if i + 5 < 32: qk(i+5)
        A(a[2]); A(b[2])
        if qkint and (i // 2 + 1) % qkint == 0 and i < 30: load("V", nv); nv += 1
    stamp(2)
    for _ in range(qkload): load("V", nv); nv += 1
    stamp(3)
    A(f"s_mov_b32 s46, {SCALE:#x}"); A(f"s_mov_b32 s47, {SCALE:#x}")
    for i in range(4): A(f"v_cvt_pk_bf16_f32 v{P+i}, v{S+2*i}, v{S+2*i+1}")
    for i in range(4): unpack(S+2*i, S+2*i+1, P+i)
    for i in range(4): A(f"v_pk_mul_f32 {vr(S+2*i,2)}, {vr(S+2*i,2)}, {sPK}")
    for i in range(4): A(f"v_cvt_pk_bf16_f32 v{P+i}, v{S+2*i}, v{S+2*i+1}")
    for i in range(4): unpack(S+2*i, S+2*i+1, P+i)
    M_, Lr = TM, TM+1
    A(f"v_max3_f32 v{M_}, v{S}, v{S+1}, v{S+2}")
    A(f"v_max3_f32 v{TM+2}, v{S+3}, v{S+4}, v{S+5}")
    A(f"v_max3_f32 v{M_}, v{M_}, v{S+6}, v{S+7}")
    A(f"v_max_f32 v{M_}, v{M_}, v{TM+2}")
    A(f"v_max_f32_dpp v{M_}, v{M_}, v{M_} row_ror:4 {DPPF}")
    A(f"v_max_f32_dpp v{M_}, v{M_}, v{M_} row_ror:8 {DPPF}")
    rows_reduce("v_max_f32", M_, TM+2)
    for _ in range(smint): load("V", nv); nv += 1
    A(f"s_mov_b32 s46, {LOG2E:#x}"); A(f"s_mov_b32 s47, {LOG2E:#x}")
    for i in range(4):
        A(f"v_pk_add_f32 {vr(S+2*i,2)}, {vr(S+2*i,2)}, {vr(M_,2)} op_sel_hi:[1,0] neg_lo:[0,1] neg_hi:[0,1]")
    for i in range(4): A(f"v_pk_mul_f32 {vr(S+2*i,2)}, {vr(S+2*i,2)}, {sPK}")
    for i in range(8): A(f"v_exp_f32 v{S+i}, v{S+i}")
    for i in range(4): A(f"v_cvt_pk_bf16_f32 v{P+i}, v{S+2*i}, v{S+2*i+1}")
    A(f"v_pk_add_f32 {vr(S,2)}, {vr(S,2)}, {vr(S+2,2)}")
    A(f"v_pk_add_f32 {vr(S+4,2)}, {vr(S+4,2)}, {vr(S+6,2)}")
    A(f"v_pk_add_f32 {vr(S,2)}, {vr(S,2)}, {vr(S+4,2)}")
    A(f"v_add_f32 v{Lr}, v{S}, v{S+1}")
    A(f"v_add_f32_dpp v{Lr}, v{Lr}, v{Lr} row_ror:4 {DPPF}")
    A(f"v_add_f32_dpp v{Lr}, v{Lr}, v{Lr} row_ror:8 {DPPF}")
    rows_reduce("v_add_f32", Lr, TM+2)
    A(f"s_lshl_b32 {sT0}, {XX}, 12"); A(f"s_lshl_b32 {sT1}, {J_}, 5"); A(f"s_add_u32 {sT0}, {sT0}, {sT1}")
    A(f"s_lshl_b32 {sT1}, {W_}, 3"); A(f"s_add_u32 {sT0}, {sT0}, {sT1}"); A(f"s_add_u32 {sT0}, {sT0}, {ST}")
    A(f"v_lshl_add_u32 v10, v5, 10, {sT0}")
    A(f"s_lshl_b32 {sT1}, {W_}, 2")
    A(f"v_lshl_add_u32 v11, v5, 4, {sT1}")
    A(f"v_min_u32 v{M_}, -2, v{M_}"); A(f"v_min_u32 v{Lr}, -2, v{Lr}")
    A(f"s_cmp_eq_u32 {sMODE}, 0")
    A("s_mov_b64 exec, 0xf")
    if "s" not in skip:
        mstore([f"global_store_dwordx2 v10, {vr(M_,2)}, {sWS}"]); vm.issue("stats", store=True)
    A(f"ds_write_b32 v11, v{M_} offset:{L_M}")
    A("s_mov_b64 exec, -1")
    for _ in range(smload): load("V", nv); nv += 1
    stamp(8)
    for r in range(32): A(f"v_mov_b32 v{AT[0]+r}, 0")
    def build_at(blk):
        for t in range(4):
            for r in range(4):
                n = 4*((t - r) % 4)
                ctl = f"row_ror:{n}" if n else "quad_perm:[0,1,2,3]"
                A(f"v_mov_b32_dpp v{AT[blk&1]+4*t+r}, v{P+blk} {ctl} row_mask:0xf bank_mask:{1<<t:#x}")
    def perm(blk, r, e):
        A(f"v_perm_b32 v{QD+4*e+r}, v{vreg(8*blk+2*r+1)+(e>>1)}, v{vreg(8*blk+2*r)+(e>>1)}, {sSELHI if e&1 else sSELLO}")
    def pvm(blk, e):
        c = "0" if (blk == 0 and (e & 3) == 0) else vr(O+4*(e>>2),4)
        A(f"v_mfma_f32_16x16x32_bf16 {vr(O+4*(e>>2),4)}, {vr(AT[blk&1]+4*(e&3),4)}, {vr(QD+4*e,4)}, {c}")
    def pv(blk):
        for r in range(3):
            vm.wait(("V", 8*blk+2*r+1))
            for e in range(8): perm(blk, r, e)
        vm.wait(("V", 8*blk+7))
        perm(blk, 3, 0); perm(blk, 3, 1); perm(blk, 3, 2)
        for e in range(8):
            pvm(blk, e)
            if e + 3 < 8: perm(blk, 3, e+3)
    if smint: load("V", nv); nv += 1
    build_at(0)
    if smint: load("V", nv); nv += 1
    build_at(1)
    while nv < min(pv0, 32): load("V", nv); nv += 1
    if pv0 <= 32: pv(0); build_at(2)
    while nv < min(pv1, 32): load("V", nv); nv += 1
    if pv1 <= 32: pv(1); build_at(3)
    while nv < 32: load("V", nv); nv += 1
    A("s_waitcnt lgkmcnt(0)")
    stamp(9)
    A("s_barrier")
    F = TM + 4
    if prio: A("s_setprio 3")
    A(f"s_lshl_b32 {sT0}, {W_}, 4")
    A(f"v_mov_b32 v10, {sT0}")
    A(f"ds_read_b128 {vr(F,4)}, v10 offset:{L_M}")
    A(f"s_lshl_b32 {sT0}, {W_}, 11")
    A(f"v_lshl_add_u32 v12, v0, 2, {sT0}")
    A(f"s_lshl_b32 {sT0}, {W_}, 9")
    A(f"v_lshl_add_u32 v13, v0, 3, {sT0}")
    A(f"s_lshl_b32 {sT0}, {XX}, 15"); A(f"s_lshl_b32 {sT1}, {W_}, 13"); A(f"s_add_u32 {sT0}, {sT0}, {sT1}")
    in1slot(sT1, sT2)
    A(f"s_add_u32 {sT0}, {sT0}, {sT1}"); A(f"s_add_u32 {sT0}, {sT0}, {IN1}")
    A(f"v_lshl_add_u32 v14, v3, 11, {sT0}")
    if h1lay:
        A("v_and_b32 v11, 7, v0"); A("v_bfe_u32 v15, v0, 3, 1")
        A("v_lshl_add_u32 v14, v11, 2, v14"); A("v_lshl_add_u32 v14, v15, 7, v14")
    else:
        A("v_lshl_add_u32 v14, v2, 2, v14")
    A("s_waitcnt lgkmcnt(0)")
    A(f"v_max3_f32 v10, v{F}, v{F+1}, v{F+2}")
    A(f"v_max_f32 v10, v10, v{F+3}")
    for i in range(4): A(f"v_sub_f32 v{F+i}, v{F+i}, v10")
    for i in range(4): A(f"v_mul_f32 v{F+i}, {sL2E}, v{F+i}")
    for i in range(4): A(f"v_exp_f32 v{F+i}, v{F+i}")
    if pv0 > 32: pv(0); build_at(2)
    if pv1 > 32: pv(1); build_at(3)
    pv(2)
    stamp(10)
    pv(3)
    for h in range(4):
        A(f"ds_write2st64_b32 v12, v{O+h}, v{O+4+h} offset0:{L_O//256+2*h} offset1:{L_O//256+2*h+1}")
    A("s_waitcnt lgkmcnt(0)")
    stamp(11)
    A("s_barrier")
    R = QD
    for w in range(4): A(f"ds_read_b64 {vr(R+2*w,2)}, v13 offset:{L_O+2048*w}")
    A(f"s_cmp_eq_u32 {sMODE}, 0")
    A("s_waitcnt lgkmcnt(0)")
    A(f"v_pk_mul_f32 {vr(R,2)}, {vr(R,2)}, {vr(F,2)} op_sel_hi:[1,0]")
    A(f"v_pk_fma_f32 {vr(R,2)}, {vr(R+2,2)}, {vr(F,2)}, {vr(R,2)} op_sel:[0,1,0] op_sel_hi:[1,1,1]")
    A(f"v_pk_fma_f32 {vr(R,2)}, {vr(R+4,2)}, {vr(F+2,2)}, {vr(R,2)} op_sel_hi:[1,0,1]")
    A(f"v_pk_fma_f32 {vr(R,2)}, {vr(R+6,2)}, {vr(F+2,2)}, {vr(R,2)} op_sel:[0,1,0] op_sel_hi:[1,1,1]")
    A(f"v_cvt_pk_bf16_f32 v{R}, v{R}, v{R+1}")
    A(f"v_min_u32 v{R}, -2, v{R}")
    if h1sc1: A(f"global_store_dword v14, v{R}, {sWS} sc1")
    else: mstore([f"global_store_dword v14, v{R}, {sWS}"])
    if defer < 8: A("s_barrier")
    stamp(12)
    if diag:
        A(f"s_cmp_eq_u32 {sMODE}, 0"); A("s_cbranch_scc1 L_dm"); stamp(13); A("L_dm:")
    A("s_barrier")
    if wbl2 & 2:
        A(f"s_lshl_b32 {sT1}, {J_}, 3"); A(f"s_add_u32 {sT1}, {sT1}, {W_}"); A(f"s_cmp_lg_u32 {sT1}, 0"); A("s_cbranch_scc1 L_fin")
        A("buffer_wbl2 sc1")
    A("L_fin:")
    if probe >= 0:
        stamp(14)
        A("s_waitcnt vmcnt(0)")
        stamp(15)
        A("s_waitcnt lgkmcnt(0)")
        A("v_readfirstlane_b32 s40, v1")
        if pwave >= 0:
            A(f"s_cmp_lg_u32 s40, {pwave}"); A("s_cbranch_scc1 L_end")
        if pwg >= 0:
            A(f"s_cmp_lg_u32 s2, {pwg}"); A("s_cbranch_scc1 L_end")
        A("s_sub_u32 s41, s66, s64"); A(f"s_mul_i32 s41, s41, {pmul}"); A("s_add_u32 s41, s41, 4000")
        if pxcc:
            A("s_getreg_b32 s42, hwreg(HW_REG_XCC_ID, 0, 4)"); A(f"s_and_b32 s42, s42, {pxcc}"); A("s_mul_i32 s42, s42, 1000"); A("s_add_u32 s41, s41, s42")
        A("L_spin:")
        A("s_memrealtime s[68:69]"); A("s_waitcnt lgkmcnt(0)")
        A("s_sub_u32 s42, s68, s64"); A("s_cmp_lt_u32 s42, s41"); A("s_cbranch_scc1 L_spin")
    if diag:
        stamp(14)
        A("s_waitcnt vmcnt(0)")
        stamp(15)
        A("s_waitcnt lgkmcnt(0)")
        A("L_dl:"); A("s_sleep 16"); A("s_memrealtime s[60:61]"); A("s_waitcnt lgkmcnt(0)"); A("s_sub_u32 s60, s60, s64"); A("s_cmp_lt_u32 s60, 2200"); A("s_cbranch_scc1 L_dl")
        A("s_mov_b64 exec, 1")
        A("v_readfirstlane_b32 s40, v1")
        A("s_lshl_b32 s41, s2, 3"); A("s_add_u32 s40, s40, s41"); A("s_lshl_b32 s40, s40, 8"); A("s_add_u32 s40, s40, 0x10000000")
        A("v_mov_b32 v2, s40")
        for k in range(16):
            A(f"v_mov_b32 v4, s{64+2*k}"); A(f"v_mov_b32 v5, s{65+2*k}")
            A(f"global_store_dwordx2 v2, v[4:5], {sWS} offset:{8*k}")
            A("s_nop 1")
    A("L_end:")
    A("s_endpgm")
    if padT:
        A("L_tab:")
        for wg in range(256):
            x, j = wg & 7, wg >> 3
            a_ = PERM[j]
            if a_ < 16: c = 512 if (a_ >> 1) == 3 else 256
            elif (x & 1) and a_ >= 28: c = 0
            else: c = 384 if BLK[x][(a_ >> 2) & 3] % 4 == 3 else 256
            o = 128 if ((x & 1) and j >= 24) else 192
            if (x & 1) and j >= 24: c -= 72
            if (j & 7) == 3: o *= 2
            if j == 31: c += 90
            T = padTo if (x & 1) and padTo else padT
            A(f".long {max(0, round((T - c - o) / 36))}")
    A('.section .rodata,"a"'); A(".p2align 6"); A(f".amdhsa_kernel {KNAME}")
    A("  .amdhsa_next_free_vgpr 256"); A("  .amdhsa_next_free_sgpr 102"); A("  .amdhsa_accum_offset 256")
    A("  .amdhsa_group_segment_fixed_size 0"); A("  .amdhsa_kernarg_size 96"); A("  .amdhsa_user_sgpr_count 2")
    A("  .amdhsa_user_sgpr_kernarg_segment_ptr 1"); A("  .amdhsa_system_sgpr_workgroup_id_x 1")
    A("  .amdhsa_float_denorm_mode_32 3")
    A(".end_amdhsa_kernel")
    lines = []
    for l in L: lines.extend(l.split("\n"))
    lines = hazard_pass(lines)
    return "\n".join(lines) + "\n"

if __name__ == "__main__":
    ap = argparse.ArgumentParser()
    ap.add_argument("out")
    ap.add_argument("--opt", nargs="*", default=[])
    a = ap.parse_args()
    kw = {}
    for o in a.opt:
        k, v = o.split("=")
        try: v = int(v)
        except ValueError: pass
        kw[k] = v
    open(a.out, "w").write(gen(**kw))
```
